```python
import torch

def _softmax(x, axis=-1):
    return torch.softmax(x, dim=axis)
def _gelu(x):
    return torch.nn.functional.gelu(x, approximate="tanh")
def _silu(x):
    return torch.nn.functional.silu(x)
def _sigmoid(x):
    return torch.sigmoid(x)
def _layernorm(x, axis=-1, eps=1e-5):
    m = x.mean(dim=axis, keepdim=True)
    v = x.var(dim=axis, keepdim=True, unbiased=False)
    return (x - m) / torch.sqrt(v + eps)
def _scatter_add(tgt, idx, src, axis=0):
    return tgt.clone().index_add_(axis, idx, src)
def _segment_sum(src, seg, n):
    out = torch.zeros((n,) + src.shape[1:], dtype=src.dtype)
    return out.index_add_(0, seg, src)
def _pad(x, pw):
    flat = tuple(v for pair in reversed(pw) for v in pair)
    return torch.nn.functional.pad(x, flat)

kernel_name = 'sequential_preLN__spectral_gfnet__glu_gated_glu__prompt'

def setup_inputs():

    _w = (lambda a: (lambda t: t.to(torch.bfloat16) if t.is_floating_point() else t)(torch.as_tensor(a)))
    def _A_setup():
        B, S, D = 1, 2048, 512
        Df = D // 2 + 1
        return {
            "x": _w((lambda *s: torch.randn(*s, dtype=torch.bfloat16) * 0.05)(B, S, D)),
            "w_r": _w((lambda *s: torch.randn(*s, dtype=torch.bfloat16) * 0.4)(S, Df) * 0.02),
            "w_i": _w((lambda *s: torch.randn(*s, dtype=torch.bfloat16) * 0.4)(S, Df) * 0.02),
        }
    _A_in = _A_setup()

    def _B_setup():
        B, S, D, F = 1, 2048, 512, 1792
        return {
            "x": _w((lambda *s: torch.randn(*s, dtype=torch.bfloat16) * 0.05)(B, S, D)),
            "w_gate": _w((lambda *s: torch.randn(*s, dtype=torch.bfloat16) * 0.05)(D, F)),
            "w_up": _w((lambda *s: torch.randn(*s, dtype=torch.bfloat16) * 0.05)(D, F)),
            "w_down": _w((lambda *s: torch.randn(*s, dtype=torch.bfloat16) * 0.05)(F, D)),
        }
    _B_in = _B_setup()

    return {
        "A_x": _A_in["x"],
        "A_w_r": _A_in["w_r"],
        "A_w_i": _A_in["w_i"],
        "B_x": _B_in["x"],
        "B_w_gate": _B_in["w_gate"],
        "B_w_up": _B_in["w_up"],
        "B_w_down": _B_in["w_down"],
    }

def reference(A_x, A_w_r, A_w_i, B_x, B_w_gate, B_w_up, B_w_down):
    def _A_ref(x, w_r, w_i):
        B, S, D = x.shape
        X = (lambda x, axes=(-2,-1): torch.fft.rfft2(x.float(), dim=axes))(x, axes=(-2, -1))
        W = w_r + 1j * w_i
        X = X * W
        y = (lambda x, s, axes=(-2,-1): torch.fft.irfft2(x, s=s, dim=axes).to(torch.bfloat16))(X, (S, D), axes=(-2, -1))
        return y

    def _B_ref(x, w_gate, w_up, w_down):
        g = torch.einsum("bsd,df->bsf", x, w_gate)
        u = torch.einsum("bsd,df->bsf", x, w_up)
        h = _sigmoid(g) * u
        return torch.einsum("bsf,fd->bsd", h, w_down)

    x = A_x
    h = x + _A_ref(_layernorm(x, axis=-1), A_w_r, A_w_i)
    h2 = h + _B_ref(_layernorm(h, axis=-1), B_w_gate, B_w_up, B_w_down)
    return h2
```

```python
import re

TRANS = ("v_exp_f32","v_log_f32","v_rcp_f32","v_rsq_f32","v_sqrt_f32","v_sin_f32","v_cos_f32","v_rcp_iflag_f32",
         "v_exp_f16","v_log_f16","v_rcp_f16","v_rsq_f16","v_sqrt_f16","v_sin_f16","v_cos_f16")

def regs_of(tok):
    tok = tok.strip()
    tok = re.sub(r"^-", "", tok)
    m = re.match(r"^abs\((.*)\)$", tok)
    if m: tok = m.group(1)
    m = re.match(r"^\|(.*)\|$", tok)
    if m: tok = m.group(1)
    m = re.match(r"^([vas])(\d+)$", tok)
    if m: return [(m.group(1), int(m.group(2)))]
    m = re.match(r"^([vas])\[(\d+):(\d+)\]$", tok)
    if m: return [(m.group(1), i) for i in range(int(m.group(2)), int(m.group(3))+1)]
    if tok == "vcc": return [("s", 106), ("s", 107)]
    if tok == "vcc_lo": return [("s", 106)]
    if tok == "vcc_hi": return [("s", 107)]
    if tok == "exec": return [("s", 126), ("s", 127)]
    if tok == "exec_lo": return [("s", 126)]
    if tok == "exec_hi": return [("s", 127)]
    if tok == "m0": return [("s", 124)]
    return []

def split_ops(s):
    out, depth, cur = [], 0, ""
    for ch in s:
        if ch in "[(": depth += 1
        if ch in "])": depth -= 1
        if ch == "," and depth == 0:
            out.append(cur.strip()); cur = ""
        else: cur += ch
    if cur.strip(): out.append(cur.strip())
    return out

class Ins:
    def __init__(self, text):
        self.text = text
        t = text.split(";")[0].strip()
        self.label = t.endswith(":")
        self.directive = t.startswith(".")
        self.empty = (t == "")
        self.op = ""; self.w = []; self.r = []; self.kind = "other"
        self.states = 1
        if self.label or self.directive or self.empty:
            self.states = 0; return
        parts = t.split(None, 1)
        op = parts[0]; rest = parts[1] if len(parts) > 1 else ""
        ops = split_ops(rest)
        mods = ""
        if ops:
            last = ops[-1].split(None, 1)
            ops[-1] = last[0]
            mods = last[1] if len(last) > 1 else ""
        self.mods = mods
        base = re.sub(r"_(e32|e64|dpp|sdwa)$", "", op)
        self.op = base
        self.dpp = op.endswith("_dpp") or any(k in mods for k in ("row_", "quad_perm", "wave_"))
        self.sdwa = op.endswith("_sdwa") or "dst_sel" in mods
        R = [regs_of(o) for o in ops]
        flat = lambda L: [x for l in L for x in l]
        if base == "s_nop":
            self.kind = "nop"; self.states = int(ops[0], 0) + 1
        elif base.startswith("v_mfma") or base.startswith("v_smfmac"):
            self.kind = "mfma"; self.w = R[0]; self.a = R[1]; self.b = R[2]; self.c = R[3] if len(R) > 3 else []
            self.r = self.a + self.b + self.c
            if "32x32x16" in base or "32x32x8" in base or "32x32x32_i8" in base: self.passes = 8
            elif "16x16x32" in base or "16x16x16" in base or "16x16x64_i8" in base: self.passes = 4
            else: raise ValueError("unknown mfma " + base)
        elif base.startswith("v_"):
            self.kind = "valu"
            if base.startswith("v_cmpx"):
                self.w = R[0] + [("s",126),("s",127)]; self.r = flat(R[1:])
            elif base.startswith("v_cmp"):
                self.w = R[0]; self.r = flat(R[1:])
            elif base in ("v_permlane32_swap_b32","v_permlane16_swap_b32","v_swap_b32"):
                self.w = R[0]+R[1]; self.r = R[0]+R[1]
            elif re.match(r"v_(add|sub|subrev)_co_u32", base) or base.startswith("v_div_scale") or base.startswith("v_mad_u64") or base.startswith("v_mad_i64"):
                self.w = R[0]+R[1]; self.r = flat(R[2:])
            elif re.match(r"v_(addc|subb|subbrev)_co_u32", base):
                self.w = R[0]+R[1]; self.r = flat(R[2:])
            elif base == "v_nop":
                pass
            else:
                self.w = R[0]; self.r = flat(R[1:])
                if base.startswith("v_fmac") or base.startswith("v_dot2c") or base.startswith("v_pk_fmac") or base=="v_writelane_b32" or self.dpp or self.sdwa:
                    self.r = self.r + R[0]
                if base == "v_cndmask_b32" and len(ops) == 3: self.r += [("s",106),("s",107)]
            self.trans = base in TRANS
        elif base.startswith("ds_"):
            self.kind = "ds"
            if base.startswith("ds_read") or base.startswith("ds_bpermute") or base.startswith("ds_permute") or base.startswith("ds_swizzle") or "_rtn" in base:
                self.w = R[0]; self.r = flat(R[1:])
            else: self.r = flat(R)
        elif base.startswith("buffer_") or base.startswith("global_") or base.startswith("flat_"):
            self.kind = "vmem"
            self.ldsdma = ("_lds_" in base) or re.search(r"\blds\b", mods) is not None
            self.wide_store = []
            if base in ("buffer_wbl2","buffer_inv"):
                pass
            elif self.ldsdma:
                self.r = flat(R) + [("s",124)]
            elif "_load" in base:
                self.w = R[0]; self.r = flat(R[1:])
            elif "_store" in base:
                self.r = flat(R)
                if base.endswith("x3") or base.endswith("x4"):
                    self.wide_store = R[0] if base.startswith("buffer_") else R[1]
            elif "_atomic" in base:
                if "sc0" in mods.split():
                    self.w = R[0]
                    self.r = flat(R) if base.startswith("buffer_") else flat(R[1:])
                else: self.r = flat(R)
        elif base.startswith("s_"):
            self.kind = "salu"
            if base.startswith("s_cmp") or base.startswith("s_cbranch") or base in ("s_branch","s_waitcnt","s_barrier","s_endpgm","s_sleep","s_setprio","s_bitcmp0_b32","s_bitcmp1_b32","s_setreg_b32","s_setreg_imm32_b32","s_sethalt"):
                self.r = flat(R)
            elif base.startswith("s_load") or base.startswith("s_buffer_load") or base in("s_memtime","s_memrealtime"):
                self.kind = "smem"; self.w = R[0]; self.r = flat(R[1:])
            else:
                self.w = R[0]; self.r = flat(R[1:])
                if "saveexec" in base: self.w = self.w + [("s",126),("s",127)]
            self.branch = base.startswith("s_cbranch") or base == "s_branch"

def isv(r): return r[0] in "va"

def need(p, c):
    n = 0
    pw, cr, cw = set(p.w), set(c.r), set(c.w)
    if p.kind == "valu":
        pv = {r for r in pw if isv(r)}; ps = {r for r in pw if not isv(r)}
        if c.kind == "mfma" and pv & cr: n = max(n, 2)
        if c.kind == "valu":
            if c.dpp and pv & cr: n = max(n, 2)
            if c.op.startswith("v_permlane") and pv & cr: n = max(n, 2)
            if c.op in ("v_readlane_b32","v_readfirstlane_b32") and pv & cr: n = max(n, 1)
            if p.trans and (pv & cr or pv & cw): n = max(n, 1)
            if (p.sdwa or "op_sel" in p.mods) and (pv & cr or pv & cw): n = max(n, 1)
            if ps & cr:
                n = max(n, 4 if c.op in ("v_readlane_b32","v_writelane_b32") else 2)
                if c.op.startswith("v_div_fmas"): n = max(n, 4)
            if ("s",126) in ps:
                if c.dpp: n = max(n, 5)
                if c.op in ("v_readlane_b32","v_readfirstlane_b32","v_writelane_b32") or c.op.startswith("v_permlane"): n = max(n, 4)
            if p.op.startswith("v_dot") and (pv & cr or pv & cw):
                if not (c.op == p.op and not (pv & set(c.r[:-len(c.w)] if c.op.startswith("v_dot2c") else c.r[:-1]))): n = max(n, 3)
        if p.op.startswith("v_dot") and c.kind in ("mfma","vmem","ds") and pv & cr: n = max(n, 3)
        if p.trans and c.kind in ("vmem","ds") and pv & cr: n = max(n, 1)
        if c.kind == "mfma" and ("s",126) in ps: n = max(n, 4)
        if c.kind == "vmem" and ps & cr: n = max(n, 5)
        if c.kind in ("salu","smem") and ps & cr: n = max(n, 1)
    if p.kind == "mfma":
        P = p.passes
        if c.kind == "mfma":
            if pw & set(c.a + c.b): n = max(n, {4:8, 8:12}[P])
            if pw & set(c.c):
                if c.c == p.w and c.passes == P: pass
                else: n = max(n, {4:6, 8:10}[P])
            elif pw & cw:
                n = max(n, {4:6, 8:10}[P])
        elif c.kind in ("valu","vmem","ds"):
            if pw & cr or pw & cw: n = max(n, {4:8, 8:12}[P])
        if c.kind in ("valu","ds","vmem") and set(p.c) & cw: n = max(n, {4:3, 8:7}[P])
    if p.kind == "salu":
        if ("s",124) in pw and ((c.kind == "vmem" and c.ldsdma) or (c.kind=="ds" and "addtid" in c.op) or c.op.startswith("s_movrel")): n = max(n, 1)
    if p.kind == "vmem" and p.wide_store:
        if set(p.wide_store) & cw: n = max(n, 2 if c.kind in("valu","mfma") else 1)
    return n

MAXW = 20

class Prog:
    def __init__(self):
        self.lines = []
    def __call__(self, s, *a):
        if a: s = s % a
        for l in s.split("\n"):
            l = l.strip()
            if l: self.lines.append(l)
    def raw(self, s): self.lines.append(s)
    def finish(self):
        ins = [Ins(l) for l in self.lines]
        changed = True
        it = 0
        while changed:
            changed = False; it += 1
            assert it < 50
            labels = {i.text.split(";")[0].strip()[:-1]: k for k, i in enumerate(ins) if i.label}
            def preds(k):
                out = []
                if k > 0:
                    q = ins[k-1]
                    if not (q.op in ("s_branch","s_endpgm")): out.append(k-1)
                if ins[k].label:
                    name = ins[k].text.split(";")[0].strip()[:-1]
                    for j, q in enumerate(ins):
                        if q.kind == "salu" and q.branch and q.text.split(";")[0].split()[-1] == name: out.append(j)
                return out
            pm = {}
            k = 0
            while k < len(ins):
                c = ins[k]
                if c.states == 0 or c.kind == "nop":
                    k += 1; continue
                worst = 0
                stack = [(p, 0) for p in preds(k)]
                seen = {}
                while stack:
                    j, dist = stack.pop()
                    if dist >= MAXW: continue
                    if j in seen and seen[j] <= dist: continue
                    seen[j] = dist
                    p = ins[j]
                    if p.states and p.kind != "nop":
                        n = need(p, c)
                        if n - dist > worst: worst = n - dist
                    for q in preds(j): stack.append((q, dist + p.states))
                if worst > 0:
                    new = []
                    w = worst
                    while w > 0:
                        t = min(w, 16); new.append(Ins("s_nop %d" % (t-1))); w -= t
                    ins[k:k] = new
                    k += len(new)
                    changed = True
                k += 1
        return "\n".join(("" if (i.label or i.directive) else "    ") + i.text for i in ins) + "\n"

def vr(b, n=1, k="v"):
    return "%s%d" % (k, b) if n == 1 else "%s[%d:%d]" % (k, b, b+n-1)
def ar(b, n=1): return vr(b, n, "a")
def sr(b, n=1): return vr(b, n, "s")

def kernel_desc(name, vgpr, agpr=0, sgpr=96):
    acc = (vgpr + 3)//4*4
    nfv = acc + agpr if agpr else vgpr
    return f""".section .rodata,"a"
.p2align 6
.amdhsa_kernel {name}
  .amdhsa_next_free_vgpr {nfv}
  .amdhsa_next_free_sgpr {sgpr}
  .amdhsa_accum_offset {acc}
  .amdhsa_group_segment_fixed_size 0
  .amdhsa_kernarg_size 80
  .amdhsa_user_sgpr_count 2
  .amdhsa_user_sgpr_kernarg_segment_ptr 1
  .amdhsa_system_sgpr_workgroup_id_x 1
  .amdhsa_float_denorm_mode_32 3
  .amdhsa_float_denorm_mode_16_64 3
.end_amdhsa_kernel
"""
```

```python
import sys
from asmgen import *
NAME = "sequential_preLN__spectral_gfnet__glu_gated_glu__prompt"
MB = 1 << 20
WS_XA, WS_WP, WS_XB, WS_H, WS_LN2, WS_HH, WS_WGU, WS_WD = 0, 2*MB, 4*MB, 6*MB, 8*MB, 10*MB, 18*MB, 22*MB

class RA:
    def __init__(self, start=0): self.n = start; self.hi = start
    def __call__(self, n=1, align=None):
        al = align or (1 if n == 1 else (2 if n == 2 else 4))
        self.n = (self.n + al - 1)//al*al
        b = self.n; self.n += n; self.hi = max(self.hi, self.n); return b

def f2u(f):
    import struct
    return struct.unpack("<I", struct.pack("<f", f))[0]
def fl(f): return "0x%08x" % f2u(f)

def prologue(p, name, nwg):
    p.raw(".globl %s" % name); p.raw(".p2align 8"); p.raw(".type %s,@function" % name); p.raw("%s:" % name)
    p(f"""s_cmp_ge_u32 s2, {nwg}
    s_cbranch_scc1 {name}_end
    s_load_dwordx16 s[16:31], s[0:1], 0
    s_load_dwordx4 s[32:35], s[0:1], 64
    v_lshrrev_b32 v1, 6, v0
    v_and_b32 v2, 63, v0
    v_readfirstlane_b32 s3, v1""")

def add64(p, d, base, off):
    p(f"s_add_u32 s{d}, s{base}, {off}")
    p(f"s_addc_u32 s{d+1}, s{base+1}, 0")

def cmul(p, dr, di, ar_, ai, c, s, neg=False, tmp=None):
    if not neg:
        p(f"v_mul_f32 {dr}, {ar_}, {c}" if c[0]=='v' else f"v_mul_f32 {dr}, {c}, {ar_}")
        p(f"v_mul_f32 {di}, {ai}, {c}" if c[0]=='v' else f"v_mul_f32 {di}, {c}, {ai}")
        p(f"v_fma_f32 {dr}, {ai}, {s}, {dr}")
        p(f"v_fma_f32 {di}, -{ar_}, {s}, {di}")
    else:
        p(f"v_mul_f32 {dr}, {ar_}, {c}" if c[0]=='v' else f"v_mul_f32 {dr}, {c}, {ar_}")
        p(f"v_mul_f32 {di}, {ai}, {c}" if c[0]=='v' else f"v_mul_f32 {di}, {c}, {ai}")
        p(f"v_fma_f32 {dr}, -{ai}, {s}, {dr}")
        p(f"v_fma_f32 {di}, {ar_}, {s}, {di}")

def reduce4(p, a, b, c, d, t):
    p(f"v_permlane32_swap_b32 v{a}, v{c}")
    p(f"v_permlane32_swap_b32 v{b}, v{d}")
    p(f"v_add_f32 v{a}, v{a}, v{c}")
    p(f"v_add_f32 v{b}, v{b}, v{d}")
    p(f"v_permlane16_swap_b32 v{a}, v{b}")
    p(f"v_add_f32 v{a}, v{a}, v{b}")
    for m in ("quad_perm:[1,0,3,2]", "quad_perm:[2,3,0,1]", "row_half_mirror", "row_mirror"):
        p(f"v_add_f32_dpp v{a}, v{a}, v{a} {m} row_mask:0xf bank_mask:0xf")
    p(f"v_mov_b32 v{t}, v{a}")
    p(f"v_permlane16_swap_b32 v{a}, v{t}")

def rnd_bf16(p, r):
    p(f"v_cvt_pk_bf16_f32 v{r}, v{r}, v{r}")
    p(f"v_and_b32 v{r}, 0xffff0000, v{r}")

def ln_stats(p, a, t):
    p(f"v_mul_f32 v{a}, {fl(1/512)}, v{a}")
    p(f"v_mul_f32 v{t}, {fl(1/512)}, v{t}")
    p(f"v_fma_f32 v{t}, -v{a}, v{a}, v{t}")
    p(f"v_max_f32 v{t}, 0, v{t}")
    rnd_bf16(p, t)
    p(f"v_add_f32 v{t}, {fl(1e-5)}, v{t}")
    rnd_bf16(p, t)
    p(f"v_sqrt_f32 v{t}, v{t}")
    rnd_bf16(p, a)
    rnd_bf16(p, t)
    p(f"v_rcp_f32 v{t}, v{t}")

MF16 = "v_mfma_f32_16x16x32_bf16"
MF32 = "v_mfma_f32_32x32x16_bf16"

def role_wprep(p, tid, barrier=True):
    R = RA(8)
    ka, kb, k, mir, col2, sgn, t = [R() for _ in range(7)]
    off = [R() for _ in range(8)]
    dr = R(8, 4); di = R(8, 4)
    so = R()
    p(f"""v_lshrrev_b32 v{ka}, 6, v{tid}
    v_lshlrev_b32 v{ka}, 2, v{ka}
    v_and_b32 v{t}, 3, v{tid}
    v_or_b32 v{ka}, v{ka}, v{t}
    v_bfe_u32 v{kb}, v{tid}, 2, 4
    v_lshl_add_u32 v{k}, v{kb}, 5, v{ka}""")
    p(f"""v_subrev_u32 v{t}, 240, v{k}
    v_cmp_eq_u32 s[40:41], 0, v{ka}
    v_cmp_le_u32 s[42:43], 8, v{kb}
    s_and_b64 s[44:45], s[40:41], s[42:43]
    v_cndmask_b32 v{k}, v{k}, v{t}, s[44:45]
    v_mov_b32 v{t}, 0x100
    v_cmp_eq_u32 vcc, 0, v{k}
    v_cndmask_b32 v{k}, v{k}, v{t}, vcc
    v_cmp_lt_u32 vcc, 0x100, v{k}
    v_sub_u32 v{t}, 0x200, v{k}
    v_cndmask_b32 v{col2}, v{k}, v{t}, vcc
    v_lshlrev_b32 v{col2}, 1, v{col2}
    v_cndmask_b32 v{sgn}, 1, -1, vcc
    v_mov_b32 v{t}, 0x80000000
    v_cndmask_b32 v{mir}, 0, v{t}, vcc
    s_movk_i32 s47, 514
    v_lshlrev_b32 v{so}, 5, v{tid}""")
    p("s_lshl_b32 s46, s2, 1")
    p("s_waitcnt lgkmcnt(0)")
    for i in range(8):
        mlo, tp = i >> 2, i & 3
        p(f"s_add_u32 s48, s46, {512*tp + mlo}")
        p(f"v_mul_i32_i24 v{off[i]}, s48, v{sgn}")
        p(f"v_and_b32 v{off[i]}, 0x7ff, v{off[i]}")
        p(f"v_mad_u32_u24 v{off[i]}, v{off[i]}, s47, v{col2}")
        p(f"global_load_ushort v{dr+i}, v{off[i]}, s[18:19]")
        p(f"global_load_ushort v{di+i}, v{off[i]}, s[20:21]")
    p(f"s_lshl_b32 s46, s2, 13")
    p(f"s_add_u32 s46, s46, {WS_WP}")
    add64(p, 4, 34, "s46")
    if barrier: p("s_barrier")
    for i in range(8):
        p(f"s_waitcnt vmcnt({14-2*i})")
        p(f"v_lshl_or_b32 v{dr+i}, v{di+i}, 16, v{dr+i}")
        p(f"v_xor_b32 v{dr+i}, v{mir}, v{dr+i}")
    p(f"global_store_dwordx4 v{so}, v[{dr}:{dr+3}], s[4:5]")
    p(f"global_store_dwordx4 v{so}, v[{dr+4}:{dr+7}], s[4:5] offset:16")
    p("s_endpgm")
    return R.hi

def k1():
    p = Prog(); name = "p1_kernel"
    prologue(p, name, 256)
    p(f"""s_cmp_ge_u32 s3, 4
    s_cbranch_scc1 {name}_w""")
    R = RA(3)
    va = R(); n = R(); g = R(); fn = R(); t0 = R(); t1 = R()
    ang = R(4); c = R(4); s = R(4)
    B1re = R(4); B1im = R(4); B2re = R(4); B2im = R(4); S2re = R(4); S2im = R(4)
    Tc = R(4); Ts = R(4)
    XA = R(4); XB = R(4)
    DAr = R(4); DAi = R(4); DBr = R(4); DBi = R(4)
    Pr = R(4); Pi = R(4); Mr = R(4); Mi = R(4)
    st = R(4); st_t = R(); m32 = R(); cp = R(); cm = R(); selr = R(); seli = R(); wc = R(); wsn = R()
    Er = R(4); Ei = R(4); Fr = R(4); Fi = R(4)
    la = R(); ga = R()
    p(f"""s_lshl_b32 s8, s3, 8
    s_add_u32 s8, s8, s2
    s_lshl_b32 s9, s8, 10
    v_lshlrev_b32 v{va}, 4, v2
    s_lshl_b32 s10, s3, 11
    s_mov_b32 m0, s10
    s_waitcnt lgkmcnt(0)""")
    add64(p, 4, 16, "s9")
    add64(p, 6, 4, "0x100000")
    p(f"global_load_lds_dwordx4 v{va}, s[4:5]")
    p("s_add_u32 m0, s10, 1024")
    p(f"global_load_lds_dwordx4 v{va}, s[6:7]")
    p(f"""v_and_b32 v{n}, 15, v2
    v_lshrrev_b32 v{g}, 4, v2
    v_cvt_f32_u32 v{fn}, v{n}
    v_cvt_f32_u32 v{t0}, v{g}
    v_mul_f32 v{fn}, {fl(1/32)}, v{fn}
    v_mul_f32 v{t0}, 4.0, v{t0}
    v_mul_f32 v{ang}, v{t0}, v{fn}""")
    for i in range(1, 4): p(f"v_add_f32 v{ang+i}, v{ang+i-1}, v{fn}")
    for i in range(4):
        p(f"v_cos_f32 v{c+i}, v{ang+i}"); p(f"v_sin_f32 v{s+i}, v{ang+i}")
    p(f"v_cmp_eq_u32 s[40:41], 0, v{n}")
    p(f"v_lshlrev_b32 v{t1}, 31, v{n}")
    p(f"v_lshrrev_b32 v{m32}, 16, v{t1}")
    p(f"v_or_b32 v{t1}, v{t1}, v{m32}")
    p(f"v_mov_b32 v{m32}, 0xbf803f80")
    for i in range(2):
        p(f"v_cvt_pk_bf16_f32 v{B1re+i}, v{c+2*i}, v{c+2*i+1}")
        p(f"v_cvt_pk_bf16_f32 v{B1im+i}, -v{s+2*i}, -v{s+2*i+1}")
        p(f"v_cndmask_b32 v{B1im+i}, v{B1im+i}, v{m32}, s[40:41]")
        p(f"v_xor_b32 v{B1re+2+i}, v{t1}, v{B1re+i}")
        p(f"v_xor_b32 v{B1im+2+i}, v{t1}, v{B1im+i}")
    p(f"v_mov_b32 v{m32}, {fl(-32.0)}")
    p(f"v_cndmask_b32 v{m32}, 0, v{m32}, s[40:41]")
    for i in range(4):
        p(f"v_mul_f32 v{Ts+i}, {fl(1/16)}, v{ang+i}")
        p(f"v_cos_f32 v{Tc+i}, v{Ts+i}"); p(f"v_sin_f32 v{Ts+i}, v{Ts+i}")
    for i in range(4):
        p(f"v_add_f32 v{ang+i}, v{ang+i}, v{ang+i}")
        p(f"v_cos_f32 v{c+i}, v{ang+i}"); p(f"v_sin_f32 v{s+i}, v{ang+i}")
    for i in range(4):
        p(f"v_cvt_pk_bf16_f32 v{B2re+i}, v{c+i}, v{s+i}")
        p(f"v_cvt_pk_bf16_f32 v{B2im+i}, -v{s+i}, v{c+i}")
    p(f"""v_lshlrev_b32 v{t1}, 1, v{n}
    v_subrev_u32 v{fn}, 15, v{t1}
    v_cmp_le_u32 s[42:43], 8, v{n}
    v_cndmask_b32 v{t1}, v{t1}, v{fn}, s[42:43]
    v_cndmask_b32 v{t1}, v{t1}, 16, s[40:41]
    v_cvt_f32_u32 v{fn}, v{t1}
    v_mul_f32 v{fn}, {fl(1/32)}, v{fn}
    v_mul_f32 v{ang}, v{t0}, v{fn}""")
    for i in range(1, 4): p(f"v_add_f32 v{ang+i}, v{ang+i-1}, v{fn}")
    p(f"""v_mov_b32 v{selr}, 0x0c0c0100
    v_mov_b32 v{t1}, 0x01000c0c
    v_cndmask_b32 v{selr}, v{selr}, v{t1}, s[42:43]
    v_mov_b32 v{seli}, 0x0c0c0302
    v_mov_b32 v{t1}, 0x03020c0c
    v_cndmask_b32 v{seli}, v{seli}, v{t1}, s[42:43]""")
    for i in range(4):
        p(f"v_cos_f32 v{c+i}, v{ang+i}"); p(f"v_sin_f32 v{s+i}, v{ang+i}")
    for i in range(4):
        p(f"v_cvt_pk_bf16_f32 v{c+i}, v{c+i}, -v{s+i}")
        p(f"v_perm_b32 v{S2re+i}, v{c+i}, v{c+i}, v{selr}")
        p(f"v_perm_b32 v{S2im+i}, v{c+i}, v{c+i}, v{seli}")
    p(f"""v_cvt_f32_u32 v{wc}, s8
    v_mul_f32 v{wc}, {fl(1/2048)}, v{wc}
    v_sin_f32 v{wsn}, v{wc}
    v_cos_f32 v{wc}, v{wc}
    v_cmp_gt_u32 s[44:45], 16, v2
    v_lshl_add_u32 v{la}, v2, 3, s10
    s_mov_b32 s12, 0x3f803f80""")
    p("s_waitcnt vmcnt(0)")
    p(f"ds_read_b64_tr_b16 v[{XA}:{XA+1}], v{la}")
    p(f"ds_read_b64_tr_b16 v[{XA+2}:{XA+3}], v{la} offset:512")
    p(f"ds_read_b64_tr_b16 v[{XB}:{XB+1}], v{la} offset:1024")
    p(f"ds_read_b64_tr_b16 v[{XB+2}:{XB+3}], v{la} offset:1536")
    p(f"""s_lshl_b32 s11, s3, 10
    s_add_u32 s11, s11, 8192
    v_lshl_add_u32 v{la}, v2, 4, s11""")
    p("s_waitcnt lgkmcnt(2)")
    p(f"{MF16} v[{DAr}:{DAr+3}], v[{XA}:{XA+3}], v[{B1re}:{B1re+3}], 0")
    p(f"{MF16} v[{DAi}:{DAi+3}], v[{XA}:{XA+3}], v[{B1im}:{B1im+3}], 0")
    p("s_waitcnt lgkmcnt(0)")
    p(f"{MF16} v[{DBr}:{DBr+3}], v[{XB}:{XB+3}], v[{B1re}:{B1re+3}], 0")
    p(f"{MF16} v[{DBi}:{DBi+3}], v[{XB}:{XB+3}], v[{B1im}:{B1im+3}], 0")
    for q, X in ((0, XA), (2, XB)):
        for i in range(4):
            p(f"v_dot2_f32_bf16 v{st+q}, v{X+i}, s12, {'0' if i==0 else 'v%d'%(st+q)}")
            p(f"v_dot2_f32_bf16 v{st+q+1}, v{X+i}, v{X+i}, {'0' if i==0 else 'v%d'%(st+q+1)}")
    reduce4(p, st, st+1, st+2, st+3, st_t)
    ln_stats(p, st, st_t)
    p(f"v_mul_f32 v{st}, v{st}, v{st_t}")
    p(f"v_readlane_b32 s13, v{st_t}, 0")
    p(f"v_readlane_b32 s14, v{st_t}, 32")
    p(f"v_readlane_b32 s36, v{st}, 0")
    p(f"v_readlane_b32 s37, v{st}, 32")
    p(f"v_mul_f32 v{cp}, s36, v{m32}")
    p(f"v_fma_f32 v{cm}, -v{m32}, s37, v{cp}")
    p(f"v_fma_f32 v{cp}, v{m32}, s37, v{cp}")
    for i in range(4):
        p(f"v_fma_f32 v{Pr+i}, v{DAr+i}, s13, v{cp}")
        p(f"v_fma_f32 v{Mr+i}, v{DAr+i}, s13, v{cm}")
        p(f"v_mul_f32 v{Mi+i}, s13, v{DAi+i}")
        p(f"v_fma_f32 v{Pr+i}, v{DBr+i}, s14, v{Pr+i}")
        p(f"v_fma_f32 v{Mr+i}, -v{DBr+i}, s14, v{Mr+i}")
        p(f"v_fma_f32 v{Pi+i}, v{DBi+i}, s14, v{Mi+i}")
        p(f"v_fma_f32 v{Mi+i}, -v{DBi+i}, s14, v{Mi+i}")
    for i in range(4):
        cmul(p, f"v{DAr+i}", f"v{DAi+i}", f"v{Pr+i}", f"v{Pi+i}", f"v{Tc+i}", f"v{Ts+i}")
        p(f"v_cvt_pk_bf16_f32 v{XA+i}, v{DAr+i}, v{DAi+i}")
    p(f"{MF16} v[{Pr}:{Pr+3}], v[{XA}:{XA+3}], v[{B2re}:{B2re+3}], 0")
    p(f"{MF16} v[{Pi}:{Pi+3}], v[{XA}:{XA+3}], v[{B2im}:{B2im+3}], 0")
    p(f"{MF16} v[{Er}:{Er+3}], v[{XA}:{XA+3}], v[{S2re}:{S2re+3}], 0")
    p(f"{MF16} v[{Ei}:{Ei+3}], v[{XA}:{XA+3}], v[{S2im}:{S2im+3}], 0")
    for i in range(4):
        cmul(p, f"v{DBr+i}", f"v{DBi+i}", f"v{Mr+i}", f"v{Mi+i}", f"v{Tc+i}", f"v{Ts+i}")
        p(f"v_cvt_pk_bf16_f32 v{XB+i}, v{DBr+i}, v{DBi+i}")
    p(f"{MF16} v[{Mr}:{Mr+3}], v[{XB}:{XB+3}], v[{B2re}:{B2re+3}], 0")
    p(f"{MF16} v[{Mi}:{Mi+3}], v[{XB}:{XB+3}], v[{B2im}:{B2im+3}], 0")
    p(f"{MF16} v[{Fr}:{Fr+3}], v[{XB}:{XB+3}], v[{S2re}:{S2re+3}], 0")
    p(f"{MF16} v[{Fi}:{Fi+3}], v[{XB}:{XB+3}], v[{S2im}:{S2im+3}], 0")
    p(f"v_cndmask_b32 v{Pr}, v{Pr}, v{Er}, s[44:45]")
    p(f"v_cndmask_b32 v{Pi}, v{Pi}, v{Ei}, s[44:45]")
    for i in range(4): p(f"v_cvt_pk_bf16_f32 v{XA+i}, v{Pr+i}, v{Pi+i}")
    p(f"ds_write_b128 v{la}, v[{XA}:{XA+3}]")
    p(f"v_cndmask_b32 v{Mr}, v{Mr}, v{Fr}, s[44:45]")
    p(f"v_cndmask_b32 v{Mi}, v{Mi}, v{Fi}, s[44:45]")
    for i in range(4):
        cmul(p, f"v{DBr+i}", f"v{DBi+i}", f"v{Mr+i}", f"v{Mi+i}", f"v{wc}", f"v{wsn}")
        p(f"v_cvt_pk_bf16_f32 v{XB+i}, v{DBr+i}, v{DBi+i}")
    p(f"ds_write_b128 v{la}, v[{XB}:{XB+3}] offset:{4096+64}")
    p(f"""v_and_b32 v{t0}, 1, v0
    v_mul_u32_u24 v{t0}, {4096+64}, v{t0}
    v_lshrrev_b32 v{t1}, 1, v0
    v_lshl_add_u32 v{t0}, v{t1}, 2, v{t0}
    v_add_u32 v{t0}, 8192, v{t0}
    v_lshlrev_b32 v{ga}, 4, v0
    s_lshl_b32 s9, s2, 13
    s_add_u32 s9, s9, {WS_XA}""")
    add64(p, 4, 34, "s9")
    add64(p, 6, 4, 4096)
    p("s_waitcnt lgkmcnt(0)")
    p("s_barrier")
    p(f"ds_read2st64_b32 v[{XA}:{XA+1}], v{t0} offset0:0 offset1:4")
    p(f"ds_read2st64_b32 v[{XA+2}:{XA+3}], v{t0} offset0:8 offset1:12")
    p(f"ds_read2st64_b32 v[{XB}:{XB+1}], v{t0} offset0:2 offset1:6")
    p(f"ds_read2st64_b32 v[{XB+2}:{XB+3}], v{t0} offset0:10 offset1:14")
    p("s_waitcnt lgkmcnt(2)")
    p(f"global_store_dwordx4 v{ga}, v[{XA}:{XA+3}], s[4:5]")
    p("s_waitcnt lgkmcnt(0)")
    p(f"global_store_dwordx4 v{ga}, v[{XB}:{XB+3}], s[6:7]")
    p("s_endpgm")
    p(f"{name}_w:")
    p("v_and_b32 v3, 0xff, v0")
    hi = role_wprep(p, 3)
    p(f"{name}_end:")
    p("s_endpgm")
    return name, p.finish(), max(R.hi, hi), 0, (256, 512, 8192+8192+64)

KERNELS = [k1]

def build(kernels, path):
    hdr = open("cdna_kernels/%s.s.ref" % NAME).read().split("; Override launch")[0]
    body = ""; desc = ""; launches = ""
    done = {}
    for k in kernels:
        name, text, nv, na, (grid, block, lds) = k()
        launches += f"; @launch kernel={name} grid=({grid},1,1) block=({block},1,1) lds={lds}\n"
        if name in done: continue
        done[name] = 1
        body += text + "\n"
        desc += kernel_desc(name, nv, na)
    s = hdr + launches + '.amdgcn_target "amdgcn-amd-amdhsa--gfx950"\n.text\n' + body + desc
    open(path, "w").write(s)

if __name__ == "__main__":
    build(KERNELS, sys.argv[1] if len(sys.argv) > 1 else "out.s")
```

```python
from gen import *

def k2():
    p = Prog(); name = "p2_kernel"
    prologue(p, name, 256)
    R = RA(3)
    rho = R(); g = R(); va = R(); t0 = R(); t1 = R(); fo = R(2); fi = R(2); sg = R(); la = R(); lb = R()
    ang = R(); c = R(2); s = R(2)
    M = [[[R(4) for ri in range(2)] for xo in range(2)] for xi in range(2)]
    Tc = [R(4), R(4)]; Ts = [R(4), R(4)]
    Oc = [R(4), R(4)]; Os = [R(4), R(4)]
    In = [R(4), R(4)]; Wp = [R(4), R(4)]
    Wr = [R(4), R(4)]; Wi = [R(4), R(4)]
    D = [[R(4), R(4)], [R(4), R(4)]]
    E = [R(), R()]
    P = [R(4), R(4)]
    p(f"""s_and_b32 s8, s2, 7
    s_lshl_b32 s8, s8, 5
    s_lshr_b32 s9, s2, 3
    s_add_u32 s8, s8, s9
    s_lshr_b32 s10, s3, 1
    s_and_b32 s11, s3, 1
    s_lshl_b32 s8, s8, 5
    s_lshl_b32 s9, s10, 4
    s_add_u32 s8, s8, s9
    s_lshl_b32 s9, s11, 20
    s_add_u32 s12, s8, s9
    s_xor_b32 s9, s9, 0x100000
    s_add_u32 s13, s8, s9
    v_and_b32 v{rho}, 15, v2
    v_lshrrev_b32 v{g}, 4, v2
    v_and_b32 v{t0}, 3, v2
    v_bfe_u32 v{t1}, v2, 2, 2
    v_lshl_add_u32 v{t0}, v{t0}, 3, v{t1}
    s_lshl_b32 s14, s11, 2
    v_add_u32 v{t1}, s14, v{t0}
    v_lshl_add_u32 v{va}, v{g}, 5, v{t1}
    v_lshlrev_b32 v{va}, 13, v{va}
    s_waitcnt lgkmcnt(0)""")
    add64(p, 4, 34, "s12"); add64(p, 6, 34, "s13")
    p(f"global_load_dwordx4 v[{In[0]}:{In[0]+3}], v{va}, s[4:5]")
    p(f"global_load_dwordx4 v[{In[1]}:{In[1]+3}], v{va}, s[6:7]")
    add64(p, 36, 4, WS_WP - WS_XA); add64(p, 38, 6, WS_WP - WS_XA)
    p(f"global_load_dwordx4 v[{Wp[0]}:{Wp[0]+3}], v{va}, s[36:37]")
    p(f"global_load_dwordx4 v[{Wp[1]}:{Wp[1]+3}], v{va}, s[38:39]")
    add64(p, 36, 4, WS_XB - WS_XA); add64(p, 38, 6, WS_XB - WS_XA)
    p(f"""v_cvt_f32_u32 v{fo}, v{t1}
    v_xor_b32 v{t1}, 4, v{t1}
    v_cvt_f32_u32 v{fo+1}, v{t1}
    v_add_u32 v{t1}, s14, v{g}
    v_cvt_f32_u32 v{fi}, v{t1}
    v_xor_b32 v{t1}, 4, v{t1}
    v_cvt_f32_u32 v{fi+1}, v{t1}
    v_lshlrev_b32 v{sg}, 29, v2
    v_and_b32 v{sg}, 0x80000000, v{sg}
    v_lshrrev_b32 v{t1}, 16, v{sg}
    v_or_b32 v{sg}, v{sg}, v{t1}""")
    for xo in range(2):
        p(f"v_mul_f32 v{t0}, {fl(1/32)}, v{fo+xo}")
        p(f"v_mul_f32 v{t1}, {fl(1/4)}, v{fo+xo}")
        for xi in range(2):
            p(f"v_mul_f32 v{ang}, v{fi+xi}, v{t0}")
            p(f"v_cos_f32 v{c}, v{ang}"); p(f"v_sin_f32 v{s}, v{ang}")
            p(f"v_add_f32 v{ang}, v{ang}, v{t1}")
            p(f"v_cos_f32 v{c+1}, v{ang}"); p(f"v_sin_f32 v{s+1}, v{ang}")
            for i in range(2):
                p(f"v_cvt_pk_bf16_f32 v{M[xi][xo][0]+i}, v{c+i}, v{s+i}")
                p(f"v_cvt_pk_bf16_f32 v{M[xi][xo][1]+i}, -v{s+i}, v{c+i}")
            for i in range(2):
                p(f"v_xor_b32 v{M[xi][xo][0]+2+i}, v{sg}, v{M[xi][xo][0]+i}")
                p(f"v_xor_b32 v{M[xi][xo][1]+2+i}, v{sg}, v{M[xi][xo][1]+i}")
    for xo in (1, 0):
        p(f"v_mul_f32 v{t0}, {fl(1/1024)}, v{fo+xo}")
        p(f"v_mul_f32 v{t1}, {fl(1/128)}, v{fo+xo}")
        p(f"v_mul_f32 v{ang}, v{fi}, v{t0}")
        for r in range(4):
            if r: p(f"v_add_f32 v{ang}, v{ang}, v{t1}")
            p(f"v_cos_f32 v{Tc[xo]+r}, v{ang}"); p(f"v_sin_f32 v{Ts[xo]+r}, v{ang}")
    p(f"v_cvt_f32_u32 v{t1}, s10")
    p(f"v_mul_f32 v{t0}, {fl(1/2048)}, v{t1}")
    p(f"v_mul_f32 v{t1}, {fl(1/8)}, v{t1}")
    for x in range(2):
        p(f"v_mul_f32 v{ang}, {fl(32.0)}, v{fi+x}")
        p(f"v_add_f32 v{ang}, v{ang}, v{fo}")
        p(f"v_mul_f32 v{ang}, v{ang}, v{t0}")
        for r in range(4):
            if r: p(f"v_add_f32 v{ang}, v{ang}, v{t1}")
            p(f"v_cos_f32 v{Oc[x]+r}, v{ang}"); p(f"v_sin_f32 v{Os[x]+r}, v{ang}")
    p(f"""s_lshl_b32 s9, s3, 10
    v_lshl_add_u32 v{la}, v2, 4, s9
    v_xor_b32 v{lb}, 0x400, v{la}""")
    def mf(d, a, b, cc): p(f"{MF16} v[{d}:{d+3}], v[{a}:{a+3}], v[{b}:{b+3}], {'0' if cc is None else 'v[%d:%d]'%(cc,cc+3)}")
    def fft(ldsoff, first):
        if first: p("s_waitcnt vmcnt(3)")
        for x in (1, 0):
            for ri in range(2): mf(D[x][ri], In[0], M[0][x][ri], None)
        if first: p("s_waitcnt vmcnt(2)")
        for x in (1, 0):
            for ri in range(2): mf(D[x][ri], In[1], M[1][x][ri], D[x][ri])
        for x in (1, 0):
            for r in range(4):
                cmul(p, f"v{E[0]}", f"v{E[1]}", f"v{D[x][0]+r}", f"v{D[x][1]+r}", f"v{Tc[x]+r}", f"v{Ts[x]+r}")
                p(f"v_cvt_pk_bf16_f32 v{P[x]+r}, v{E[0]}, v{E[1]}")
            if x == 1: p(f"ds_write_b128 v{la}, v[{P[1]}:{P[1]+3}] offset:{ldsoff}")
        p("s_waitcnt lgkmcnt(0)")
        p("s_barrier")
        p(f"ds_read_b128 v[{P[1]}:{P[1]+3}], v{lb} offset:{ldsoff}")
        for x in range(2):
            for ri in range(2): mf(D[x][ri], M[0][x][ri], P[0], None)
        if first:
            p("s_waitcnt vmcnt(0)")
            for x in range(2):
                for r in range(4):
                    p(f"v_lshlrev_b32 v{Wr[x]+r}, 16, v{Wp[x]+r}")
                    p(f"v_and_b32 v{Wi[x]+r}, 0xffff0000, v{Wp[x]+r}")
        p("s_waitcnt lgkmcnt(0)")
        for x in range(2):
            for ri in range(2): mf(D[x][ri], M[1][x][ri], P[1], D[x][ri])
    fft(0, True)
    for x in range(2):
        for r in range(4):
            cmul(p, f"v{E[0]}", f"v{E[1]}", f"v{D[x][0]+r}", f"v{D[x][1]+r}", f"v{Wr[x]+r}", f"v{Wi[x]+r}", neg=True)
            p(f"v_cvt_pk_bf16_f32 v{In[x]+r}, v{E[1]}, v{E[0]}")
    fft(4096, False)
    for x in range(2):
        for r in range(4):
            cmul(p, f"v{E[0]}", f"v{E[1]}", f"v{D[x][0]+r}", f"v{D[x][1]+r}", f"v{Oc[x]+r}", f"v{Os[x]+r}")
            p(f"v_cvt_pk_bf16_f32 v{P[x]+r}, v{E[1]}, v{E[0]}")
        p(f"global_store_dwordx4 v{va}, v[{P[x]}:{P[x]+3}], s[{36+2*x}:{37+2*x}]")
    p(f"{name}_end:")
    p("s_endpgm")
    return name, p.finish(), R.hi, 0, (256, 256, 8192)

def k3():
    p = Prog(); name = "p3_kernel"
    prologue(p, name, 256)
    R = RA(3)
    n = R(); g = R(); va = R(); vx = R(); vl = R(); t0 = R(); t1 = R(); fn = R(); fg = R()
    ang = R(4); c = R(4); s = R(4)
    B1re = R(4); B1im = R(4); S1re = R(4); S1im = R(4); B3 = [R(4), R(4)]
    Tc = R(4); Ts = R(4)
    V = [R(4), R(4)]; X = [R(4), R(4)]
    D = [[R(4), R(4)], [R(4), R(4)]]; Sp = [[R(4), R(4)], [R(4), R(4)]]
    Y = [[R(4), R(4)], [R(4), R(4)]]
    E = [R(), R()]
    st = R(4); st_t = R()
    p(f"""s_lshl_b32 s8, s3, 8
    s_add_u32 s8, s8, s2
    s_lshl_b32 s9, s8, 10
    s_lshl_b32 s10, s2, 13
    s_lshl_b32 s11, s3, 2
    s_add_u32 s11, s11, s10
    s_add_u32 s11, s11, {WS_XB}
    v_and_b32 v{n}, 15, v2
    v_lshrrev_b32 v{g}, 4, v2
    v_bfe_u32 v{t0}, v2, 2, 2
    v_and_b32 v{t1}, 3, v2
    v_lshl_add_u32 v{t0}, v{t0}, 6, v{t1}
    v_lshl_add_u32 v{t0}, v{g}, 4, v{t0}
    v_lshlrev_b32 v{va}, 5, v{t0}
    v_lshlrev_b32 v{vx}, 5, v{n}
    v_lshl_add_u32 v{vx}, v{g}, 3, v{vx}
    s_waitcnt lgkmcnt(0)""")
    add64(p, 4, 34, "s11")
    for m in range(2):
        for r in range(4):
            p(f"global_load_dword v{V[m]+r}, v{va}, s[4:5] offset:{r*128+m*16}")
    add64(p, 4, 16, "s9"); add64(p, 6, 4, "0x100000")
    for m in range(2):
        for ah in range(2):
            p(f"global_load_dwordx2 v[{X[m]+2*ah}:{X[m]+2*ah+1}], v{vx}, s[{4+2*m}:{5+2*m}] offset:{512*ah}")
    p(f"s_add_u32 s9, s9, {WS_H}")
    add64(p, 36, 34, "s9"); add64(p, 38, 36, "0x100000")
    p(f"""s_lshl_b32 s11, s3, 5
    s_add_u32 s11, s11, s10
    s_add_u32 s11, s11, {WS_LN2}""")
    add64(p, 46, 34, "s11")
    p(f"""v_lshrrev_b32 v{vl}, 1, v2
    v_lshlrev_b32 v{vl}, 8, v{vl}
    v_and_b32 v{t0}, 1, v2
    v_lshl_add_u32 v{vl}, v{t0}, 4, v{vl}
    v_cvt_f32_u32 v{fn}, v{n}
    v_cvt_f32_u32 v{fg}, v{g}
    v_mul_f32 v{fn}, {fl(1/32)}, v{fn}
    v_mul_f32 v{fg}, 4.0, v{fg}
    v_mul_f32 v{ang}, v{fg}, v{fn}
    v_cmp_gt_u32 s[44:45], 16, v2
    v_cmp_gt_u32 s[42:43], 32, v2""")
    for i in range(1, 4): p(f"v_add_f32 v{ang+i}, v{ang+i-1}, v{fn}")
    for i in range(4):
        p(f"v_cos_f32 v{c+i}, v{ang+i}"); p(f"v_sin_f32 v{s+i}, v{ang+i}")
    p(f"v_lshlrev_b32 v{t0}, 31, v{n}")
    p(f"v_xor_b32 v{t0}, 0x3f803f80, v{t0}")
    for i in range(4): p(f"v_cvt_pk_bf16_f32 v{B3[0]+i}, v{c+i}, -v{s+i}")
    p(f"v_cndmask_b32 v{B3[0]}, v{B3[0]}, v{t0}, s[44:45]")
    for i in range(4):
        if i & 1: p(f"v_xor_b32 v{B3[1]+i}, 0x80008000, v{B3[0]+i}")
        else: p(f"v_mov_b32 v{B3[1]+i}, v{B3[0]+i}")
    for i in range(4):
        p(f"v_mul_f32 v{Ts+i}, {fl(1/16)}, v{ang+i}")
        p(f"v_cos_f32 v{Tc+i}, v{Ts+i}"); p(f"v_sin_f32 v{Ts+i}, v{Ts+i}")
    for i in range(4):
        p(f"v_mul_f32 v{Tc+i}, {fl(2.0**-19)}, v{Tc+i}"); p(f"v_mul_f32 v{Ts+i}, {fl(2.0**-19)}, v{Ts+i}")
    for i in range(4):
        p(f"v_add_f32 v{ang+i}, v{ang+i}, v{ang+i}")
        p(f"v_cos_f32 v{c+i}, v{ang+i}"); p(f"v_sin_f32 v{s+i}, v{ang+i}")
    for i in range(4):
        p(f"v_cvt_pk_bf16_f32 v{B1re+i}, v{c+i}, -v{s+i}")
        p(f"v_cvt_pk_bf16_f32 v{B1im+i}, v{s+i}, v{c+i}")
    p(f"v_mul_f32 v{t1}, {fl(15.0)}, v{fn}")
    for i in range(4):
        p(f"v_sub_f32 v{ang+i}, v{ang+i}, v{t1}")
        p(f"v_cos_f32 v{c+i}, v{ang+i}"); p(f"v_sin_f32 v{s+i}, v{ang+i}")
    p(f"v_lshlrev_b32 v{t0}, 15, v{n}")
    p(f"v_and_b32 v{t0}, 0x8000, v{t0}")
    p(f"v_or_b32 v{t0}, 0x3f00, v{t0}")
    for i in range(4):
        p(f"v_cvt_pk_bf16_f32 v{S1im+i}, v{c+i}, -v{s+i}")
        p(f"v_cndmask_b32 v{S1im+i}, v{S1im+i}, 0, s[42:43]")
        p(f"v_cndmask_b32 v{S1re+i}, 0, v{B1re+i}, s[42:43]")
    p(f"v_cndmask_b32 v{S1re}, v{S1re}, v{t0}, s[44:45]")
    p("s_mov_b32 s12, 0x3f803f80")
    def mf(d, a, b): p(f"{MF16} v[{d}:{d+3}], v[{a}:{a+3}], v[{b}:{b+3}], 0")
    for m in range(2):
        p(f"s_waitcnt vmcnt({8-4*m})")
        mf(D[m][0], V[m], B1re); mf(D[m][1], V[m], B1im); mf(Sp[m][0], V[m], S1re); mf(Sp[m][1], V[m], S1im)
    for m in range(2):
        for ri in range(2): p(f"v_cndmask_b32 v{D[m][ri]}, v{D[m][ri]}, v{Sp[m][ri]}, s[44:45]")
    for ri in range(2):
        for r in range(4):
            p(f"v_add_f32 v{Sp[0][ri]+r}, v{D[0][ri]+r}, v{D[1][ri]+r}")
            p(f"v_sub_f32 v{Sp[1][ri]+r}, v{D[0][ri]+r}, v{D[1][ri]+r}")
    for m in range(2):
        for r in range(4):
            cmul(p, f"v{E[0]}", f"v{E[1]}", f"v{Sp[m][0]+r}", f"v{Sp[m][1]+r}", f"v{Tc+r}", f"v{Ts+r}", neg=True)
            p(f"v_cvt_pk_bf16_f32 v{V[m]+r}, v{E[0]}, v{E[1]}")
        mf(Y[m][0], V[m], B3[0]); mf(Y[m][1], V[m], B3[1])
    p("s_waitcnt vmcnt(0)")
    for m in range(2):
        for ah in range(2):
            for q in range(2):
                p(f"v_lshlrev_b32 v{D[m][ah]+2*q}, 16, v{X[m]+2*ah+q}")
                p(f"v_and_b32 v{D[m][ah]+2*q+1}, 0xffff0000, v{X[m]+2*ah+q}")
    for m in range(2):
        for ah in range(2):
            for q in range(2):
                y = Y[m][ah]+2*q; d = D[m][ah]+2*q; hp = X[m]+2*ah+q
                p(f"v_cvt_pk_bf16_f32 v{y+1}, v{y}, v{y+1}")
                p(f"v_lshlrev_b32 v{y}, 16, v{y+1}")
                p(f"v_and_b32 v{y+1}, 0xffff0000, v{y+1}")
                p(f"v_add_f32 v{y}, v{y}, v{d}")
                p(f"v_add_f32 v{y+1}, v{y+1}, v{d+1}")
                p(f"v_cvt_pk_bf16_f32 v{hp}, v{y}, v{y+1}")
            p(f"global_store_dwordx2 v{vx}, v[{X[m]+2*ah}:{X[m]+2*ah+1}], s[{36+2*m}:{37+2*m}] offset:{512*ah}")
        for i in range(4):
            p(f"v_dot2_f32_bf16 v{st+2*m}, v{X[m]+i}, s12, {'0' if i==0 else 'v%d'%(st+2*m)}")
            p(f"v_dot2_f32_bf16 v{st+2*m+1}, v{X[m]+i}, v{X[m]+i}, {'0' if i==0 else 'v%d'%(st+2*m+1)}")
    for m in range(2):
        for ah in range(2):
            for q in range(2):
                p(f"v_lshlrev_b32 v{D[m][ah]+2*q}, 16, v{X[m]+2*ah+q}")
                p(f"v_and_b32 v{D[m][ah]+2*q+1}, 0xffff0000, v{X[m]+2*ah+q}")
    reduce4(p, st, st+1, st+2, st+3, st_t)
    ln_stats(p, st, st_t)
    p(f"v_readlane_b32 s40, v{st}, 0")
    p(f"v_readlane_b32 s41, v{st}, 32")
    p(f"v_readlane_b32 s13, v{st_t}, 0")
    p(f"v_readlane_b32 s14, v{st_t}, 32")
    for m in range(2):
        for ah in range(2):
            for q in range(2):
                d = D[m][ah]+2*q
                p(f"v_subrev_f32 v{d}, s{40+m}, v{d}")
                p(f"v_subrev_f32 v{d+1}, s{40+m}, v{d+1}")
                p(f"v_cvt_pk_bf16_f32 v{d+1}, v{d}, v{d+1}")
                p(f"v_lshlrev_b32 v{d}, 16, v{d+1}")
                p(f"v_and_b32 v{d+1}, 0xffff0000, v{d+1}")
                p(f"v_mul_f32 v{d}, s{13+m}, v{d}")
                p(f"v_mul_f32 v{d+1}, s{13+m}, v{d+1}")
                p(f"v_cvt_pk_bf16_f32 v{V[m]+2*ah+q}, v{d}, v{d+1}")
        p(f"global_store_dwordx4 v{vl}, v[{V[m]}:{V[m]+3}], s[46:47] offset:{128*m}")
    p(f"{name}_end:")
    p("s_endpgm")
    return name, p.finish(), R.hi, 0, (256, 256, 0)

if __name__ == "__main__":
    build([k1, k2, k3], sys.argv[1] if len(sys.argv) > 1 else "out.s")
```

```python
from gen2 import *

G4 = 3

def p4_order():
    o = [(t, k) for k in range(32) for t in range(G4)]
    o += [(t, k) for t in range(G4, 7) for k in range(32)]
    return o

def role_pack_gu(p, wv, ldsbase):
    R = RA(8)
    t0 = R(); t1 = R(); so = R(); la = R(); do = R()
    F = [R(4), R(4)]
    p(f"""s_lshr_b32 s48, s2, 4
    s_and_b32 s49, s2, 15
    v_bfe_u32 v{t0}, v2, 5, 1
    v_bfe_u32 v{t1}, v2, 3, 1
    v_lshl_add_u32 v{t0}, v{t0}, 1, v{t1}
    s_and_b32 s50, s49, 3
    s_lshl_b32 s50, s50, 6
    s_lshr_b32 s51, s49, 2
    s_lshl_b32 s51, s51, 2
    s_add_u32 s50, s50, s51
    v_lshl_add_u32 v{t0}, v{t0}, 4, s50
    v_bfe_u32 v{t1}, v2, 4, 1
    v_lshl_add_u32 v{t0}, v{t1}, 8, v{t0}
    v_bfe_u32 v{t1}, v2, 1, 2
    v_add_u32 v{t0}, v{t0}, v{t1}
    v_mul_u32_u24 v{so}, 3584, v{t0}
    v_and_b32 v{t1}, 1, v2
    v_lshl_add_u32 v{so}, v{t1}, 4, v{so}
    s_mul_i32 s50, s48, 224
    s_lshl_b32 s51, {wv}, 5
    s_add_u32 s50, s50, s51
    v_add_u32 v{so}, s50, v{so}
    s_lshl_b32 s52, {wv}, 11
    s_add_u32 s52, s52, {ldsbase}
    s_mov_b32 m0, s52
    s_waitcnt lgkmcnt(0)
    global_load_lds_dwordx4 v{so}, s[24:25]
    s_add_u32 m0, s52, 1024
    s_nop 0
    global_load_lds_dwordx4 v{so}, s[26:27]""")
    p(f"""v_bfe_u32 v{t0}, v2, 4, 1
    v_lshlrev_b32 v{la}, 10, v{t0}
    v_bfe_u32 v{t0}, v2, 5, 1
    v_lshl_add_u32 v{la}, v{t0}, 7, v{la}
    v_and_b32 v{t0}, 15, v2
    v_lshl_add_u32 v{la}, v{t0}, 3, v{la}
    v_add_u32 v{la}, s52, v{la}
    v_lshlrev_b32 v{do}, 4, v2""")
    p(f"""s_lshl_b32 s49, s49, 1
    s_mul_i32 s50, s49, {G4}
    s_add_u32 s50, s50, {wv}
    s_lshl_b32 s51, {wv}, 5
    s_add_u32 s51, s51, s49
    s_cmp_lt_u32 {wv}, {G4}
    s_cselect_b32 s50, s50, s51
    s_cselect_b32 s51, {G4}, 1
    s_lshl_b32 s51, s51, 10
    s_mul_i32 s48, s48, 224
    s_add_u32 s50, s50, s48
    s_lshl_b32 s50, s50, 10
    s_add_u32 s50, s50, {WS_WGU}""")
    add64(p, 4, 34, "s50"); add64(p, 6, 4, "s51")
    p("s_waitcnt vmcnt(0)")
    for ks in range(2):
        for half in range(2):
            p(f"ds_read_b64_tr_b16 v[{F[ks]+2*half}:{F[ks]+2*half+1}], v{la} offset:{ks*512+half*256}")
    for ks in range(2):
        p(f"s_waitcnt lgkmcnt({2-2*ks})")
        p(f"global_store_dwordx4 v{do}, v[{F[ks]}:{F[ks]+3}], s[{4+2*ks}:{5+2*ks}]")
    p("s_endpgm")
    return R.hi

def role_pack_d(p, wv, ldsbase):
    R = RA(8)
    t0 = R(); t1 = R(); so = R(); la = R(); do = R()
    F = R(4)
    p(f"""s_mul_i32 s48, s2, 7
    s_add_u32 s48, s48, {wv}
    s_lshr_b32 s49, s48, 4
    s_and_b32 s50, s48, 15
    s_lshl_b32 s51, s49, 14
    s_lshl_b32 s53, s50, 6
    s_add_u32 s51, s51, s53
    v_lshrrev_b32 v{t0}, 2, v2
    v_lshlrev_b32 v{so}, 10, v{t0}
    v_and_b32 v{t0}, 3, v2
    v_lshl_add_u32 v{so}, v{t0}, 4, v{so}
    v_add_u32 v{so}, s51, v{so}
    s_lshl_b32 s52, {wv}, 10
    s_add_u32 s52, s52, {ldsbase}
    s_mov_b32 m0, s52
    s_waitcnt lgkmcnt(0)
    global_load_lds_dwordx4 v{so}, s[28:29]""")
    p(f"""v_bfe_u32 v{t0}, v2, 5, 1
    v_lshlrev_b32 v{la}, 8, v{t0}
    v_bfe_u32 v{t0}, v2, 2, 2
    v_lshl_add_u32 v{la}, v{t0}, 6, v{la}
    v_bfe_u32 v{t0}, v2, 4, 1
    v_lshl_add_u32 v{la}, v{t0}, 5, v{la}
    v_and_b32 v{t0}, 3, v2
    v_lshl_add_u32 v{la}, v{t0}, 3, v{la}
    v_add_u32 v{la}, s52, v{la}
    v_lshlrev_b32 v{do}, 4, v2
    s_lshr_b32 s51, s50, 1
    s_mul_i32 s51, s51, 224
    s_lshl_b32 s49, s49, 1
    s_add_u32 s51, s51, s49
    s_and_b32 s50, s50, 1
    s_add_u32 s51, s51, s50
    s_lshl_b32 s51, s51, 10
    s_add_u32 s51, s51, {WS_WD}""")
    add64(p, 4, 34, "s51")
    p("s_waitcnt vmcnt(0)")
    p(f"ds_read_b64_tr_b16 v[{F}:{F+1}], v{la}")
    p(f"ds_read_b64_tr_b16 v[{F+2}:{F+3}], v{la} offset:512")
    p("s_waitcnt lgkmcnt(0)")
    p(f"global_store_dwordx4 v{do}, v[{F}:{F+3}], s[4:5]")
    p("s_endpgm")
    return R.hi

def k0():
    p = Prog(); name = "p0_kernel"
    prologue(p, name, 256)
    p(f"""s_cmp_ge_u32 s3, 7
    s_cbranch_scc1 {name}_d""")
    h1 = role_pack_gu(p, "s3", 0)
    p(f"{name}_d:")
    p("s_sub_u32 s3, s3, 7")
    h2 = role_pack_d(p, "s3", 14336)
    p(f"{name}_end:")
    p("s_endpgm")
    return name, p.finish(), max(h1, h2), 0, (256, 14*64, 14336+7168)

def k4():
    p = Prog(); name = "p4_kernel"
    prologue(p, name, 256)
    order = p4_order()
    NF = len(order)
    SF = 16
    NS = NF // SF
    RING = 9
    PF = 6
    R = RA(3)
    va = R(); vw = R(); vo = R(); t0 = R(); t1 = R(); lb = [R(), R(), R()]
    E = [R() for _ in range(8)]
    O = [R(4), R(4)]
    Wf = [R(4) for _ in range(PF)]
    A = [R(4) for _ in range(32)]
    acc = {}
    nacc = 7
    for t in range(7): acc[t] = 16*t
    p(f"""s_and_b32 s8, s2, 7
    s_lshr_b32 s9, s2, 3
    s_and_b32 s10, s8, 1
    s_lshl_b32 s10, s10, 3
    s_and_b32 s11, s9, 7
    s_add_u32 s10, s10, s11
    s_lshr_b32 s11, s8, 1
    s_lshl_b32 s11, s11, 2
    s_lshr_b32 s9, s9, 3
    s_add_u32 s11, s11, s9""")
    p(f"""s_lshl_b32 s12, s10, 2
    s_add_u32 s12, s12, s3
    s_lshl_b32 s13, s12, 15
    s_add_u32 s13, s13, {WS_LN2+4096}
    v_bfe_u32 v{t0}, v2, 3, 2
    v_lshlrev_b32 v{va}, 13, v{t0}
    v_and_b32 v{t0}, 7, v2
    v_lshl_add_u32 v{va}, v{t0}, 5, v{va}
    v_lshrrev_b32 v{t0}, 5, v2
    v_lshl_add_u32 v{va}, v{t0}, 4, v{va}
    s_mul_i32 s14, s11, {224*1024}
    s_add_u32 s14, s14, {WS_WGU}
    v_lshlrev_b32 v{vo}, 4, v2
    s_lshl_b32 s15, s3, 12
    v_add_u32 v{vw}, s15, v{vo}
    v_mov_b32 v{lb[0]}, v{vo}
    v_add_u32 v{lb[1]}, 0x10000, v{vo}
    v_add_u32 v{lb[2]}, 0x20000, v{vo}
    s_waitcnt lgkmcnt(0)""")
    add64(p, 4, 34, "s13"); add64(p, 6, 34, "s14")
    p(f"""s_mul_i32 s13, s12, 112
    s_mul_i32 s14, s11, 7
    s_add_u32 s13, s13, s14
    s_lshl_b32 s13, s13, 10
    s_add_u32 s13, s13, {WS_HH+3072}""")
    add64(p, 36, 34, "s13")
    vm = []
    def issue_stage(s):
        slot = s % RING
        p(f"s_add_u32 m0, s15, {slot*16384}")
        for i in range(4):
            p(f"global_load_lds_dwordx4 v{vw}, s[6:7] offset:{i*1024}")
            vm.append(("W", s)); assert len(vm) <= 63
        add64(p, 6, 6, 16384)
    def issue_a(k):
        p(f"global_load_dwordx4 v[{A[k]}:{A[k]+3}], v{va}, s[4:5] offset:{k*256-4096}")
        vm.append(("A", k))
    def wait_for(pred):
        idx = [i for i, t in enumerate(vm) if pred(t)]
        if not idx: return
        last = max(idx)
        n = len(vm) - 1 - last
        p(f"s_waitcnt vmcnt({n})")
        del vm[:last+1]
    first_use = {}
    for i, (t, k) in enumerate(order): first_use.setdefault(k, i)
    na = 0
    INIT = 7
    for s in range(INIT):
        issue_stage(s)
        while na < 32 and first_use[na] < (s+1)*SF:
            issue_a(na); na += 1
    assert na == 32 and len(vm) <= 63, (na, len(vm))
    nxt = INIT
    def rd(i):
        s = i // SF; a = (s % RING)*16384 + (i % SF)*1024
        p(f"ds_read_b128 v[{Wf[i%PF]}:{Wf[i%PF]+3}], v{lb[a>>16]} offset:{a & 0xffff}")
    def epi(t):
        b = acc[t]; o = O[t & 1]; L = []
        for h in range(2):
            for i in range(4): L.append(f"v_accvgpr_read_b32 v{E[i]}, a{b+4*h+i}")
            for i in range(4): L.append(f"v_mul_f32 v{E[i]}, {fl(-1.4426950408889634)}, v{E[i]}")
            for i in range(4): L.append(f"v_exp_f32 v{E[i]}, v{E[i]}")
            for i in range(4): L.append(f"v_accvgpr_read_b32 v{E[4+i]}, a{b+8+4*h+i}")
            for i in range(4): L.append(f"v_add_f32 v{E[i]}, 1.0, v{E[i]}")
            for i in range(4): L.append(f"v_rcp_f32 v{E[i]}, v{E[i]}")
            for i in range(4): L.append(f"v_mul_f32 v{E[i]}, v{E[i]}, v{E[4+i]}")
            for i in range(2): L.append(f"v_cvt_pk_bf16_f32 v{o+2*h+i}, v{E[2*i]}, v{E[2*i+1]}")
        L.append(("store", f"global_store_dwordx4 v{vo}, v[{o}:{o+3}], s[36:37] offset:{t*1024-3072}"))
        return L
    pend = []
    last_use = {}
    for i, (t, k) in enumerate(order): last_use[t] = i
    wait_for(lambda tg: tg == ("W", 0)); p("s_barrier")
    nrd = 0
    def reads_upto(lim):
        nonlocal nrd
        while nrd < min(lim, NF): rd(nrd); nrd += 1
    ready_stage = 0
    reads_upto(PF - 1)
    for i, (t, k) in enumerate(order):
        j = i + PF - 1
        if j < NF and j // SF > ready_stage:
            s = j // SF
            wait_for(lambda tg: tg == ("W", s))
            p("s_barrier"); ready_stage = s
            while nxt < NS and nxt - RING <= s - 2:
                issue_stage(nxt); nxt += 1
        reads_upto(j + 1)
        wait_for(lambda tg: tg == ("A", k))
        p(f"s_waitcnt lgkmcnt({min(nrd - 1 - i, 15)})")
        b = acc[t]
        p(f"{MF32} a[{b}:{b+15}], v[{Wf[i%PF]}:{Wf[i%PF]+3}], v[{A[k]}:{A[k]+3}], {'0' if k == 0 else 'a[%d:%d]'%(b,b+15)}")
        for _ in range(3):
            if pend and pend[0][0] <= i:
                x = pend.pop(0)[1]
                if isinstance(x, tuple): p(x[1]); vm.append(("S", 0))
                else: p(x)
        if last_use[t] == i:
            pend += [(i + 2, x) for x in epi(t)]
    for _, x in pend: p(x[1] if isinstance(x, tuple) else x)
    p(f"{name}_end:")
    p("s_endpgm")
    return name, p.finish(), R.hi, 16*nacc, (256, 256, RING*16384)

def k5():
    p = Prog(); name = "p5_kernel"
    prologue(p, name, 256)
    DEPTH = 14
    R = RA(3)
    vo = R(); t0 = R(); t1 = R(); lw = R(); lr = R(); go_ = R()
    Hh = [R(4), R(4)]
    Fr = [[R(4) for _ in range(4)] for _ in range(DEPTH)]
    p(f"""s_and_b32 s8, s2, 7
    s_lshr_b32 s9, s2, 3
    s_lshl_b32 s10, s8, 2
    s_and_b32 s11, s9, 3
    s_add_u32 s10, s10, s11
    s_lshr_b32 s11, s9, 2
    s_mul_i32 s12, s10, 224
    s_mul_i32 s13, s3, 28
    s_add_u32 s12, s12, s13
    s_lshl_b32 s12, s12, 10
    s_add_u32 s12, s12, {WS_HH}
    s_mul_i32 s14, s11, 112
    s_add_u32 s14, s14, s13
    s_lshl_b32 s14, s14, 11
    s_add_u32 s14, s14, {WS_WD}
    v_lshlrev_b32 v{vo}, 4, v2
    s_waitcnt lgkmcnt(0)""")
    add64(p, 4, 34, "s12"); add64(p, 6, 4, 112*1024); add64(p, 36, 34, "s14")
    def issue(k):
        f = Fr[k % DEPTH]
        p(f"global_load_dwordx4 v[{f[0]}:{f[0]+3}], v{vo}, s[4:5] offset:{(k%4)*1024}")
        p(f"global_load_dwordx4 v[{f[2]}:{f[2]+3}], v{vo}, s[36:37] offset:{(k%2)*2048}")
        p(f"global_load_dwordx4 v[{f[1]}:{f[1]+3}], v{vo}, s[6:7] offset:{(k%4)*1024}")
        p(f"global_load_dwordx4 v[{f[3]}:{f[3]+3}], v{vo}, s[36:37] offset:{(k%2)*2048+1024}")
        if k % 4 == 3: add64(p, 4, 4, 4096); add64(p, 6, 6, 4096)
        if k % 2 == 1: add64(p, 36, 36, 4096)
    for k in range(DEPTH): issue(k)
    PITCH = 272; SLAB = 64*PITCH
    p(f"""v_and_b32 v{t0}, 31, v2
    v_mul_u32_u24 v{lw}, {PITCH}, v{t0}
    v_lshrrev_b32 v{t0}, 5, v2
    v_lshl_add_u32 v{lw}, v{t0}, 4, v{lw}
    s_mul_i32 s15, s3, {SLAB}
    v_add_u32 v{lw}, s15, v{lw}
    v_lshrrev_b32 v{t0}, 3, v2
    v_mul_u32_u24 v{lr}, {PITCH}, v{t0}
    v_and_b32 v{t1}, 7, v2
    v_lshl_add_u32 v{lr}, v{t1}, 5, v{lr}
    s_mul_i32 s15, s3, {16*PITCH}
    v_add_u32 v{lr}, s15, v{lr}
    v_lshlrev_b32 v{go_}, 18, v{t0}
    v_lshl_add_u32 v{go_}, v{t1}, 4, v{go_}
    s_lshl_b32 s15, s10, 3
    s_lshl_b32 s13, s3, 1
    s_add_u32 s15, s15, s13
    s_lshl_b32 s15, s15, 10
    s_lshl_b32 s13, s11, 7
    s_add_u32 s15, s15, s13""")
    add64(p, 40, 30, "s15")
    p(f"s_add_u32 s15, s15, {WS_H}")
    add64(p, 38, 34, "s15")
    for k in range(28):
        f = Fr[k % DEPTH]
        out_after = min(28, k + DEPTH) - k - 1
        extra = 2 if k + DEPTH >= 28 + 0 and k >= 28 - DEPTH + 0 and False else 0
        c = lambda nt, rt: '0' if k == 0 else 'a[%d:%d]' % (32*nt+16*rt, 32*nt+16*rt+15)
        d = lambda nt, rt: 'a[%d:%d]' % (32*nt+16*rt, 32*nt+16*rt+15)
        hx = 2 if k > 28 - DEPTH else 0
        p(f"s_waitcnt vmcnt({4*out_after + 2 + hx})")
        p(f"{MF32} {d(0,0)}, v[{f[2]}:{f[2]+3}], v[{f[0]}:{f[0]+3}], {c(0,0)}")
        p(f"s_waitcnt vmcnt({4*out_after + 1 + hx})")
        p(f"{MF32} {d(0,1)}, v[{f[2]}:{f[2]+3}], v[{f[1]}:{f[1]+3}], {c(0,1)}")
        p(f"s_waitcnt vmcnt({4*out_after + hx})")
        p(f"{MF32} {d(1,0)}, v[{f[3]}:{f[3]+3}], v[{f[0]}:{f[0]+3}], {c(1,0)}")
        p(f"{MF32} {d(1,1)}, v[{f[3]}:{f[3]+3}], v[{f[1]}:{f[1]+3}], {c(1,1)}")
        if k + DEPTH < 28: issue(k + DEPTH)
        if k == 28 - DEPTH:
            for ps in range(2): p(f"global_load_dwordx4 v[{Hh[ps]}:{Hh[ps]+3}], v{go_}, s[38:39] offset:{ps*1024}")
    for nt in range(2):
        for rt in range(2):
            for q in range(4):
                b = 32*nt+16*rt+4*q
                p(f"ds_write_b128 v{lw}, a[{b}:{b+3}] offset:{rt*32*PITCH + nt*128 + q*32}")
    p("s_waitcnt vmcnt(0) lgkmcnt(0)")
    p("s_barrier")
    S = [[[Fr[ps*2+hf][w] for w in range(4)] for hf in range(2)] for ps in range(2)]
    for ps in range(2):
        for hf in range(2):
            for w in range(4):
                b = S[ps][hf][w]
                p(f"ds_read_b128 v[{b}:{b+3}], v{lr} offset:{w*SLAB + ps*8*PITCH + hf*16}")
    O = [Fr[4][0], Fr[4][1]]; T = Fr[5][0]
    for ps in range(2):
        for hf in range(2):
            p(f"s_waitcnt lgkmcnt({12 - 8*ps - 4*hf})")
            b = S[ps][hf]
            for i in range(4):
                p(f"v_add_f32 v{b[0]+i}, v{b[0]+i}, v{b[1]+i}")
                p(f"v_add_f32 v{b[2]+i}, v{b[2]+i}, v{b[3]+i}")
                p(f"v_add_f32 v{b[0]+i}, v{b[0]+i}, v{b[2]+i}")
            for q in range(2):
                y = b[0]+2*q; hreg = Hh[ps]+2*hf+q
                p(f"v_cvt_pk_bf16_f32 v{y+1}, v{y}, v{y+1}")
                p(f"v_lshlrev_b32 v{y}, 16, v{y+1}")
                p(f"v_and_b32 v{y+1}, 0xffff0000, v{y+1}")
                p(f"v_lshlrev_b32 v{T}, 16, v{hreg}")
                p(f"v_and_b32 v{T+1}, 0xffff0000, v{hreg}")
                p(f"v_add_f32 v{y}, v{y}, v{T}")
                p(f"v_add_f32 v{y+1}, v{y+1}, v{T+1}")
                p(f"v_cvt_pk_bf16_f32 v{O[ps]+2*hf+q}, v{y}, v{y+1}")
        p(f"global_store_dwordx4 v{go_}, v[{O[ps]}:{O[ps]+3}], s[40:41] offset:{ps*1024}")
    p(f"{name}_end:")
    p("s_endpgm")
    return name, p.finish(), R.hi, 64, (256, 256, 4*SLAB)

if __name__ == "__main__":
    build([k0, k1, k2, k3, k4, k5], sys.argv[1] if len(sys.argv) > 1 else "out.s")
```

```python
from gen2 import *

G4 = 3

def p4_order():
    o = [(t, k) for k in range(32) for t in range(G4)]
    o += [(t, k) for t in range(G4, 7) for k in range(32)]
    return o

def role_pack_gu(p, wv, ldsbase):
    R = RA(8)
    t0 = R(); t1 = R(); so = R(); la = R(); do = R()
    F = [R(4), R(4)]
    p(f"""s_lshr_b32 s48, s2, 4
    s_and_b32 s49, s2, 15
    v_bfe_u32 v{t0}, v2, 5, 1
    v_bfe_u32 v{t1}, v2, 3, 1
    v_lshl_add_u32 v{t0}, v{t0}, 1, v{t1}
    s_and_b32 s50, s49, 3
    s_lshl_b32 s50, s50, 6
    s_lshr_b32 s51, s49, 2
    s_lshl_b32 s51, s51, 2
    s_add_u32 s50, s50, s51
    v_lshl_add_u32 v{t0}, v{t0}, 4, s50
    v_bfe_u32 v{t1}, v2, 4, 1
    v_lshl_add_u32 v{t0}, v{t1}, 8, v{t0}
    v_bfe_u32 v{t1}, v2, 1, 2
    v_add_u32 v{t0}, v{t0}, v{t1}
    v_mul_u32_u24 v{so}, 3584, v{t0}
    v_and_b32 v{t1}, 1, v2
    v_lshl_add_u32 v{so}, v{t1}, 4, v{so}
    s_mul_i32 s50, s48, 224
    s_lshl_b32 s51, {wv}, 5
    s_add_u32 s50, s50, s51
    v_add_u32 v{so}, s50, v{so}
    s_lshl_b32 s52, {wv}, 11
    s_add_u32 s52, s52, {ldsbase}
    s_mov_b32 m0, s52
    s_waitcnt lgkmcnt(0)
    global_load_lds_dwordx4 v{so}, s[24:25]
    s_add_u32 m0, s52, 1024
    s_nop 0
    global_load_lds_dwordx4 v{so}, s[26:27]""")
    p(f"""v_bfe_u32 v{t0}, v2, 4, 1
    v_lshlrev_b32 v{la}, 10, v{t0}
    v_bfe_u32 v{t0}, v2, 5, 1
    v_lshl_add_u32 v{la}, v{t0}, 7, v{la}
    v_and_b32 v{t0}, 15, v2
    v_lshl_add_u32 v{la}, v{t0}, 3, v{la}
    v_add_u32 v{la}, s52, v{la}
    v_lshlrev_b32 v{do}, 4, v2""")
    p(f"""s_lshl_b32 s49, s49, 1
    s_mul_i32 s50, s49, {G4}
    s_add_u32 s50, s50, {wv}
    s_lshl_b32 s51, {wv}, 5
    s_add_u32 s51, s51, s49
    s_cmp_lt_u32 {wv}, {G4}
    s_cselect_b32 s50, s50, s51
    s_cselect_b32 s51, {G4}, 1
    s_lshl_b32 s51, s51, 10
    s_mul_i32 s48, s48, 224
    s_add_u32 s50, s50, s48
    s_lshl_b32 s50, s50, 10
    s_add_u32 s50, s50, {WS_WGU}""")
    add64(p, 4, 34, "s50"); add64(p, 6, 4, "s51")
    p("s_waitcnt vmcnt(0)")
    for ks in range(2):
        for half in range(2):
            p(f"ds_read_b64_tr_b16 v[{F[ks]+2*half}:{F[ks]+2*half+1}], v{la} offset:{ks*512+half*256}")
    for ks in range(2):
        p(f"s_waitcnt lgkmcnt({2-2*ks})")
        p(f"global_store_dwordx4 v{do}, v[{F[ks]}:{F[ks]+3}], s[{4+2*ks}:{5+2*ks}]")
    p("s_endpgm")
    return R.hi

def role_pack_d(p, wv, ldsbase):
    R = RA(8)
    t0 = R(); t1 = R(); so = R(); la = R(); do = R()
    F = R(4)
    p(f"""s_mul_i32 s48, s2, 7
    s_add_u32 s48, s48, {wv}
    s_lshr_b32 s49, s48, 4
    s_and_b32 s50, s48, 15
    s_lshl_b32 s51, s49, 14
    s_lshl_b32 s53, s50, 6
    s_add_u32 s51, s51, s53
    v_lshrrev_b32 v{t0}, 2, v2
    v_lshlrev_b32 v{so}, 10, v{t0}
    v_and_b32 v{t0}, 3, v2
    v_lshl_add_u32 v{so}, v{t0}, 4, v{so}
    v_add_u32 v{so}, s51, v{so}
    s_lshl_b32 s52, {wv}, 10
    s_add_u32 s52, s52, {ldsbase}
    s_mov_b32 m0, s52
    s_waitcnt lgkmcnt(0)
    global_load_lds_dwordx4 v{so}, s[28:29]""")
    p(f"""v_bfe_u32 v{t0}, v2, 5, 1
    v_lshlrev_b32 v{la}, 8, v{t0}
    v_bfe_u32 v{t0}, v2, 2, 2
    v_lshl_add_u32 v{la}, v{t0}, 6, v{la}
    v_bfe_u32 v{t0}, v2, 4, 1
    v_lshl_add_u32 v{la}, v{t0}, 5, v{la}
    v_and_b32 v{t0}, 3, v2
    v_lshl_add_u32 v{la}, v{t0}, 3, v{la}
    v_add_u32 v{la}, s52, v{la}
    v_lshlrev_b32 v{do}, 4, v2
    s_lshr_b32 s51, s50, 1
    s_mul_i32 s51, s51, 224
    s_lshl_b32 s49, s49, 1
    s_add_u32 s51, s51, s49
    s_and_b32 s50, s50, 1
    s_add_u32 s51, s51, s50
    s_lshl_b32 s51, s51, 10
    s_add_u32 s51, s51, {WS_WD}""")
    add64(p, 4, 34, "s51")
    p("s_waitcnt vmcnt(0)")
    p(f"ds_read_b64_tr_b16 v[{F}:{F+1}], v{la}")
    p(f"ds_read_b64_tr_b16 v[{F+2}:{F+3}], v{la} offset:512")
    p("s_waitcnt lgkmcnt(0)")
    p(f"global_store_dwordx4 v{do}, v[{F}:{F+3}], s[4:5]")
    p("s_endpgm")
    return R.hi

def k0():
    p = Prog(); name = "p0_kernel"
    prologue(p, name, 256)
    p(f"""s_cmp_ge_u32 s3, 7
    s_cbranch_scc1 {name}_d""")
    h1 = role_pack_gu(p, "s3", 0)
    p(f"{name}_d:")
    p("s_sub_u32 s3, s3, 7")
    h2 = role_pack_d(p, "s3", 14336)
    p(f"{name}_end:")
    p("s_endpgm")
    return name, p.finish(), max(h1, h2), 0, (256, 14*64, 14336+7168)

def k4():
    p = Prog(); name = "p4_kernel"
    prologue(p, name, 256)
    order = p4_order()
    NF = len(order)
    SF = 16
    NS = NF // SF
    RING = 9
    PF = 6
    R = RA(3)
    va = R(); vw = R(); vo = R(); t0 = R(); t1 = R(); lb = [R(), R(), R()]
    E = [R() for _ in range(8)]
    O = [R(4), R(4)]
    Wf = [R(4) for _ in range(PF)]
    A = [R(4) for _ in range(32)]
    acc = {}
    nacc = 7
    for t in range(7): acc[t] = 16*t
    p(f"""s_and_b32 s8, s2, 7
    s_lshr_b32 s9, s2, 3
    s_and_b32 s10, s8, 1
    s_lshl_b32 s10, s10, 3
    s_and_b32 s11, s9, 7
    s_add_u32 s10, s10, s11
    s_lshr_b32 s11, s8, 1
    s_lshl_b32 s11, s11, 2
    s_lshr_b32 s9, s9, 3
    s_add_u32 s11, s11, s9""")
    p(f"""s_lshl_b32 s12, s10, 2
    s_add_u32 s12, s12, s3
    s_lshl_b32 s13, s12, 15
    s_add_u32 s13, s13, {WS_LN2+4096}
    v_bfe_u32 v{t0}, v2, 3, 2
    v_lshlrev_b32 v{va}, 13, v{t0}
    v_and_b32 v{t0}, 7, v2
    v_lshl_add_u32 v{va}, v{t0}, 5, v{va}
    v_lshrrev_b32 v{t0}, 5, v2
    v_lshl_add_u32 v{va}, v{t0}, 4, v{va}
    s_mul_i32 s14, s11, {224*1024}
    s_add_u32 s14, s14, {WS_WGU}
    v_lshlrev_b32 v{vo}, 4, v2
    s_lshl_b32 s15, s3, 12
    v_add_u32 v{vw}, s15, v{vo}
    v_mov_b32 v{lb[0]}, v{vo}
    v_add_u32 v{lb[1]}, 0x10000, v{vo}
    v_add_u32 v{lb[2]}, 0x20000, v{vo}
    s_waitcnt lgkmcnt(0)""")
    add64(p, 4, 34, "s13"); add64(p, 6, 34, "s14")
    p(f"""s_mul_i32 s13, s12, 112
    s_mul_i32 s14, s11, 7
    s_add_u32 s13, s13, s14
    s_lshl_b32 s13, s13, 10
    s_add_u32 s13, s13, {WS_HH+3072}""")
    add64(p, 36, 34, "s13")
    vm = []
    def issue_stage(s):
        slot = s % RING
        p(f"s_add_u32 m0, s15, {slot*16384}")
        for i in range(4):
            p(f"global_load_lds_dwordx4 v{vw}, s[6:7] offset:{i*1024}")
            vm.append(("W", s)); assert len(vm) <= 63
        add64(p, 6, 6, 16384)
    def issue_a(k):
        p(f"global_load_dwordx4 v[{A[k]}:{A[k]+3}], v{va}, s[4:5] offset:{k*256-4096}")
        vm.append(("A", k))
    def wait_for(pred):
        idx = [i for i, t in enumerate(vm) if pred(t)]
        if not idx: return
        last = max(idx)
        n = len(vm) - 1 - last
        p(f"s_waitcnt vmcnt({n})")
        del vm[:last+1]
    first_use = {}
    for i, (t, k) in enumerate(order): first_use.setdefault(k, i)
    na = 0
    INIT = 7
    for s in range(INIT):
        issue_stage(s)
        while na < 32 and first_use[na] < (s+1)*SF:
            issue_a(na); na += 1
    assert na == 32 and len(vm) <= 63, (na, len(vm))
    nxt = INIT
    def rd(i):
        s = i // SF; a = (s % RING)*16384 + (i % SF)*1024
        p(f"ds_read_b128 v[{Wf[i%PF]}:{Wf[i%PF]+3}], v{lb[a>>16]} offset:{a & 0xffff}")
    def epi(t):
        b = acc[t]; o = O[t & 1]; L = []
        for h in range(2):
            for i in range(4): L.append(f"v_accvgpr_read_b32 v{E[i]}, a{b+4*h+i}")
            for i in range(4): L.append(f"v_mul_f32 v{E[i]}, {fl(-1.4426950408889634)}, v{E[i]}")
            for i in range(4): L.append(f"v_exp_f32 v{E[i]}, v{E[i]}")
            for i in range(4): L.append(f"v_accvgpr_read_b32 v{E[4+i]}, a{b+8+4*h+i}")
            for i in range(4): L.append(f"v_add_f32 v{E[i]}, 1.0, v{E[i]}")
            for i in range(4): L.append(f"v_rcp_f32 v{E[i]}, v{E[i]}")
            for i in range(4): L.append(f"v_mul_f32 v{E[i]}, v{E[i]}, v{E[4+i]}")
            for i in range(2): L.append(f"v_cvt_pk_bf16_f32 v{o+2*h+i}, v{E[2*i]}, v{E[2*i+1]}")
        L.append(("store", f"global_store_dwordx4 v{vo}, v[{o}:{o+3}], s[36:37] offset:{t*1024-3072}"))
        return L
    pend = []
    last_use = {}
    for i, (t, k) in enumerate(order): last_use[t] = i
    p("; STAMP 0")
    wait_for(lambda tg: tg == ("W", 0)); p("s_barrier")
    p("; STAMP 1")
    nrd = 0
    def reads_upto(lim):
        nonlocal nrd
        while nrd < min(lim, NF): rd(nrd); nrd += 1
    ready_stage = 0
    reads_upto(PF - 1)
    for i, (t, k) in enumerate(order):
        j = i + PF - 1
        if i % 32 == 0 and i: p("; STAMP %d" % (1 + i//32))
        if j < NF and j // SF > ready_stage:
            s = j // SF
            wait_for(lambda tg: tg == ("W", s))
            p("s_barrier"); ready_stage = s
            while nxt < NS and nxt - RING <= s - 2:
                issue_stage(nxt); nxt += 1
        reads_upto(j + 1)
        wait_for(lambda tg: tg == ("A", k))
        p(f"s_waitcnt lgkmcnt({min(nrd - 1 - i, 15)})")
        b = acc[t]
        p(f"{MF32} a[{b}:{b+15}], v[{Wf[i%PF]}:{Wf[i%PF]+3}], v[{A[k]}:{A[k]+3}], {'0' if k == 0 else 'a[%d:%d]'%(b,b+15)}")
        for _ in range(3):
            if pend and pend[0][0] <= i:
                x = pend.pop(0)[1]
                if isinstance(x, tuple): p(x[1]); vm.append(("S", 0))
                else: p(x)
        if last_use[t] == i:
            pend += [(i + 2, x) for x in epi(t)]
    p("; STAMP 8")
    for _, x in pend: p(x[1] if isinstance(x, tuple) else x)
    p(f"{name}_end:")
    p("s_endpgm")
    return name, p.finish(), R.hi, 16*nacc, (256, 256, RING*16384)

def k5():
    p = Prog(); name = "p5_kernel"
    prologue(p, name, 256)
    DEPTH = 14
    R = RA(3)
    vo = R(); t0 = R(); t1 = R(); lw = R(); lr = R(); go_ = R()
    Hh = [R(4), R(4)]
    Fr = [[R(4) for _ in range(4)] for _ in range(DEPTH)]
    p(f"""s_and_b32 s8, s2, 7
    s_lshr_b32 s9, s2, 3
    s_lshl_b32 s10, s8, 2
    s_and_b32 s11, s9, 3
    s_add_u32 s10, s10, s11
    s_lshr_b32 s11, s9, 2
    s_mul_i32 s12, s10, 224
    s_mul_i32 s13, s3, 28
    s_add_u32 s12, s12, s13
    s_lshl_b32 s12, s12, 10
    s_add_u32 s12, s12, {WS_HH}
    s_mul_i32 s14, s11, 112
    s_add_u32 s14, s14, s13
    s_lshl_b32 s14, s14, 11
    s_add_u32 s14, s14, {WS_WD}
    v_lshlrev_b32 v{vo}, 4, v2
    s_waitcnt lgkmcnt(0)""")
    add64(p, 4, 34, "s12"); add64(p, 6, 4, 112*1024); add64(p, 36, 34, "s14")
    def issue(k):
        f = Fr[k % DEPTH]
        p(f"global_load_dwordx4 v[{f[0]}:{f[0]+3}], v{vo}, s[4:5] offset:{(k%4)*1024}")
        p(f"global_load_dwordx4 v[{f[2]}:{f[2]+3}], v{vo}, s[36:37] offset:{(k%2)*2048}")
        p(f"global_load_dwordx4 v[{f[1]}:{f[1]+3}], v{vo}, s[6:7] offset:{(k%4)*1024}")
        p(f"global_load_dwordx4 v[{f[3]}:{f[3]+3}], v{vo}, s[36:37] offset:{(k%2)*2048+1024}")
        if k % 4 == 3: add64(p, 4, 4, 4096); add64(p, 6, 6, 4096)
        if k % 2 == 1: add64(p, 36, 36, 4096)
    for k in range(DEPTH): issue(k)
    PITCH = 272; SLAB = 64*PITCH
    p(f"""v_and_b32 v{t0}, 31, v2
    v_mul_u32_u24 v{lw}, {PITCH}, v{t0}
    v_lshrrev_b32 v{t0}, 5, v2
    v_lshl_add_u32 v{lw}, v{t0}, 4, v{lw}
    s_mul_i32 s15, s3, {SLAB}
    v_add_u32 v{lw}, s15, v{lw}
    v_lshrrev_b32 v{t0}, 3, v2
    v_mul_u32_u24 v{lr}, {PITCH}, v{t0}
    v_and_b32 v{t1}, 7, v2
    v_lshl_add_u32 v{lr}, v{t1}, 5, v{lr}
    s_mul_i32 s15, s3, {16*PITCH}
    v_add_u32 v{lr}, s15, v{lr}
    v_lshlrev_b32 v{go_}, 18, v{t0}
    v_lshl_add_u32 v{go_}, v{t1}, 4, v{go_}
    s_lshl_b32 s15, s10, 3
    s_lshl_b32 s13, s3, 1
    s_add_u32 s15, s15, s13
    s_lshl_b32 s15, s15, 10
    s_lshl_b32 s13, s11, 7
    s_add_u32 s15, s15, s13""")
    add64(p, 40, 30, "s15")
    p(f"s_add_u32 s15, s15, {WS_H}")
    add64(p, 38, 34, "s15")
    for k in range(28):
        if k % 4 == 0: p("; STAMP %d" % (k//4))
        f = Fr[k % DEPTH]
        out_after = min(28, k + DEPTH) - k - 1
        extra = 2 if k + DEPTH >= 28 + 0 and k >= 28 - DEPTH + 0 and False else 0
        c = lambda nt, rt: '0' if k == 0 else 'a[%d:%d]' % (32*nt+16*rt, 32*nt+16*rt+15)
        d = lambda nt, rt: 'a[%d:%d]' % (32*nt+16*rt, 32*nt+16*rt+15)
        hx = 2 if k > 28 - DEPTH else 0
        p(f"s_waitcnt vmcnt({4*out_after + 2 + hx})")
        p(f"{MF32} {d(0,0)}, v[{f[2]}:{f[2]+3}], v[{f[0]}:{f[0]+3}], {c(0,0)}")
        p(f"s_waitcnt vmcnt({4*out_after + 1 + hx})")
        p(f"{MF32} {d(0,1)}, v[{f[2]}:{f[2]+3}], v[{f[1]}:{f[1]+3}], {c(0,1)}")
        p(f"s_waitcnt vmcnt({4*out_after + hx})")
        p(f"{MF32} {d(1,0)}, v[{f[3]}:{f[3]+3}], v[{f[0]}:{f[0]+3}], {c(1,0)}")
        p(f"{MF32} {d(1,1)}, v[{f[3]}:{f[3]+3}], v[{f[1]}:{f[1]+3}], {c(1,1)}")
        if k + DEPTH < 28: issue(k + DEPTH)
        if k == 28 - DEPTH:
            for ps in range(2): p(f"global_load_dwordx4 v[{Hh[ps]}:{Hh[ps]+3}], v{go_}, s[38:39] offset:{ps*1024}")
    p("; STAMP 7")
    for nt in range(2):
        for rt in range(2):
            for q in range(4):
                b = 32*nt+16*rt+4*q
                p(f"ds_write_b128 v{lw}, a[{b}:{b+3}] offset:{rt*32*PITCH + nt*128 + q*32}")
    p("s_waitcnt vmcnt(0) lgkmcnt(0)")
    p("s_barrier")
    p("; STAMP 8")
    S = [[[Fr[ps*2+hf][w] for w in range(4)] for hf in range(2)] for ps in range(2)]
    for ps in range(2):
        for hf in range(2):
            for w in range(4):
                b = S[ps][hf][w]
                p(f"ds_read_b128 v[{b}:{b+3}], v{lr} offset:{w*SLAB + ps*8*PITCH + hf*16}")
    O = [Fr[4][0], Fr[4][1]]; T = Fr[5][0]
    for ps in range(2):
        for hf in range(2):
            p(f"s_waitcnt lgkmcnt({12 - 8*ps - 4*hf})")
            b = S[ps][hf]
            for i in range(4):
                p(f"v_add_f32 v{b[0]+i}, v{b[0]+i}, v{b[1]+i}")
                p(f"v_add_f32 v{b[2]+i}, v{b[2]+i}, v{b[3]+i}")
                p(f"v_add_f32 v{b[0]+i}, v{b[0]+i}, v{b[2]+i}")
            for q in range(2):
                y = b[0]+2*q; hreg = Hh[ps]+2*hf+q
                p(f"v_cvt_pk_bf16_f32 v{y+1}, v{y}, v{y+1}")
                p(f"v_lshlrev_b32 v{y}, 16, v{y+1}")
                p(f"v_and_b32 v{y+1}, 0xffff0000, v{y+1}")
                p(f"v_lshlrev_b32 v{T}, 16, v{hreg}")
                p(f"v_and_b32 v{T+1}, 0xffff0000, v{hreg}")
                p(f"v_add_f32 v{y}, v{y}, v{T}")
                p(f"v_add_f32 v{y+1}, v{y+1}, v{T+1}")
                p(f"v_cvt_pk_bf16_f32 v{O[ps]+2*hf+q}, v{y}, v{y+1}")
        p(f"global_store_dwordx4 v{go_}, v[{O[ps]}:{O[ps]+3}], s[40:41] offset:{ps*1024}")
    p(f"{name}_end:")
    p("s_endpgm")
    return name, p.finish(), R.hi, 64, (256, 256, 4*SLAB)

if __name__ == "__main__":
    build([k0, k1, k2, k3, k4, k5], sys.argv[1] if len(sys.argv) > 1 else "out.s")
```

```python
from gen import *
def mk(name, body, nv=64, block=256, lds=0, grid=256, na=0):
    def k():
        p = Prog()
        prologue(p, name, grid)
        p("s_waitcnt lgkmcnt(0)")
        body(p)
        p(f"{name}_end:")
        p("s_endpgm")
        return name, p.finish(), nv, na, (grid, block, lds)
    return k
def empty(p): pass
def straight(n, wide):
    def f(p):
        for i in range(n):
            if wide: p(f"v_fma_f32 v{8+i%8}, v{16+i%8}, v{24+i%8}, v{32+i%8}")
            else: p(f"v_add_f32 v{8+i%8}, v{16+i%8}, v{24+i%8}")
    return f
def loop(n, wide, name):
    def f(p):
        p(f"s_mov_b32 s40, {n//32}")
        p(f"{name}_l:")
        straight(32, wide)(p)
        p("s_sub_u32 s40, s40, 1"); p("s_cmp_lg_u32 s40, 0"); p(f"s_cbranch_scc1 {name}_l")
    return f
if __name__ == "__main__": build([mk("e0_kernel", empty), mk("e1_kernel", empty), mk("s4_kernel", straight(1024, False)), mk("l4_kernel", loop(1024, False, "l4")),
       mk("s8_kernel", straight(1024, True)), mk("l8_kernel", loop(1024, True, "l8")), mk("e2_kernel", empty),
       mk("s8b_kernel", straight(256, True)), mk("e3_kernel", empty, block=1024), mk("e4_kernel", empty, nv=256, na=256, lds=160*1024), mk("e5_kernel", empty)], "mb1.s")
```

```python
from gen3 import *
from mb1 import mk
e = mk("e0_kernel", lambda p: None)
base = [k0, k1, k2, k3, k4, k5]
build(base, "vA.s")
build(base + [e]*4, "vB.s")
build([e] + base, "vC.s")
build(base + base, "vD.s")
```

```python
import sys
from asmgen import *
from gen import RA, fl, add64, cmul, reduce4, rnd_bf16, ln_stats, MF16, MF32, NAME, MB, build
KN = NAME + "_kernel"
WS_XA, WS_XB, WS_H, WS_HH, WS_WD, WS_FL2, WS_WGU, WS_WP = 0, 4*MB, 6*MB, 10*MB, 17*MB, 19*MB - 65536, 19*MB, 23*MB
WS_LN2 = 8*MB
WS_EP = WS_FL2 + 49152
NPRE = 35
L_X = NPRE*4096
L_A = L_X + 9216
L_FLAG = 163840 - 64
L_WP = 49152
SPIN = 0x8000
def mf16(p, d, a, b, c=None):
    p(f"{MF16} v[{d}:{d+3}], v[{a}:{a+3}], v[{b}:{b+3}], {'0' if c is None else 'v[%d:%d]'%(c,c+3)}")
_lab = [0]
def lab(s):
    _lab[0] += 1
    return f"L{s}{_lab[0]}"

def maxtree(p, dst, regs):
    regs = list(regs)
    first = True
    while regs:
        if first:
            if len(regs) >= 3: a = regs[:3]; regs = regs[3:]; p(f"v_max3_u32 v{dst}, v{a[0]}, v{a[1]}, v{a[2]}")
            else: a = regs[:2]; regs = regs[2:]; p(f"v_max_u32 v{dst}, v{a[0]}, v{a[1]}")
            first = False
        elif len(regs) >= 2: a = regs[:2]; regs = regs[2:]; p(f"v_max3_u32 v{dst}, v{dst}, v{a[0]}, v{a[1]}")
        else: p(f"v_max_u32 v{dst}, v{dst}, v{regs.pop()}")

COLD = []
def poll(p, loads, regs, tmp, pre_issued=False, wait="s_waitcnt vmcnt(0)", tag=None, sleep=2):
    L = lab("poll"); C = lab("ok")
    def check(q, op):
        if tag:
            r = list(regs)
            q(f"v_and_b32 v{tmp}, v{r[0]}, v{r[1]}")
            q(f"v_or_b32 v{tag}, v{r[0]}, v{r[1]}")
            for i in range(2, len(r), 2):
                q(f"v_bitop3_b32 v{tmp}, v{tmp}, v{r[i]}, v{r[i+1]} bitop3:0x80")
                q(f"v_or3_b32 v{tag}, v{tag}, v{r[i]}, v{r[i+1]}")
            q(f"v_xor_b32 v{tmp}, s40, v{tmp}")
            q(f"v_xor_b32 v{tag}, s40, v{tag}")
            q(f"v_or_b32 v{tmp}, v{tmp}, v{tag}")
            q(f"{op}_ne_u32 vcc, 0, v{tmp}")
        else:
            maxtree(q, tmp, regs)
            q(f"{op}_le_u32 vcc, 0xffff0000, v{tmp}")
    if not pre_issued:
        for l in loads: p(l)
    p(wait)
    check(p, "v_cmp")
    p(f"s_cbranch_vccnz {L}")
    p(f"{C}:")
    q = COLD.append
    q(f"{L}:")
    q(f"s_mov_b32 s15, {SPIN}")
    q("s_mov_b64 exec, vcc")
    q(f"{L}r:")
    q(f"s_sleep {sleep}")
    for l in loads: q(l)
    q("s_sub_u32 s15, s15, 1"); q("s_cbranch_scc1 L_end")
    q("s_waitcnt vmcnt(0)")
    check(q, "v_cmpx")
    q(f"s_cbranch_execnz {L}r")
    q("s_mov_b64 exec, -1")
    q(f"s_branch {C}")

def p4_plan():
    order = [(t, k) for k in range(8) for t in range(4)]
    order += [(t, k) for k in range(8, 32) for t in (0, 1)]
    order += [(t, k) for k in range(8, 32) for t in (2, 3)]
    for t in (4, 5, 6): order += [(t, k) for k in range(32)]
    unit_of = lambda t, k: (t, k >> 2)
    last = {}; first = {}
    for i, (t, k) in enumerate(order):
        u = unit_of(t, k); last[u] = i; first.setdefault(u, i)
    units = sorted(first, key=lambda u: first[u])
    addr = {u: i*4096 for i, u in enumerate(units[:NPRE])}
    rest = units[NPRE:]
    bars = BARS
    refill = {}
    free = [L_X + 4096*i for i in range((L_FLAG - L_X)//4096)]
    freed = set()
    for b in bars:
        for u in units:
            if u in addr and u not in freed and last[u] < b: free.append(addr[u]); freed.add(u)
        n = min(len(free), len(rest), 9)
        refill[b] = []
        for _ in range(n):
            u = rest.pop(0); addr[u] = free.pop(0); refill[b].append(u)
    assert not rest, rest
    return order, unit_of, units, addr, bars, refill, first, last
BARS = [0, 32, 72, 128]
PF = 6

def kernel():
    p = Prog()
    p.raw(".globl %s" % KN); p.raw(".p2align 8"); p.raw(".type %s,@function" % KN); p.raw("%s:" % KN)
    p(f"""s_cmp_ge_u32 s2, 256
    s_cbranch_scc1 L_end
    s_load_dwordx16 s[16:31], s[0:1], 0
    s_load_dwordx4 s[32:35], s[0:1], 64
    v_lshrrev_b32 v1, 6, v0
    v_and_b32 v2, 63, v0
    v_mov_b32 v3, {L_FLAG}
    v_mov_b32 v4, 0
    v_readfirstlane_b32 s3, v1
    ds_write_b32 v3, v4
    ds_write_b32 v3, v4 offset:4
    ds_write_b32 v3, v4 offset:8
    s_and_b32 s8, s2, 7
    s_lshr_b32 s9, s2, 3
    s_and_b32 s36, s8, 1
    s_lshl_b32 s36, s36, 3
    s_and_b32 s10, s9, 7
    s_add_u32 s36, s36, s10
    s_lshr_b32 s37, s8, 1
    s_lshl_b32 s37, s37, 2
    s_lshr_b32 s10, s9, 3
    s_add_u32 s37, s37, s10
    s_lshl_b32 s38, s36, 4
    s_add_u32 s38, s38, s37
    s_lshl_b32 s39, s8, 5
    s_add_u32 s39, s39, s9
    s_waitcnt lgkmcnt(0)
    s_barrier
    s_cmp_ge_u32 s3, 4
    s_cbranch_scc1 L_helper""")
    main(p)
    p("L_helper:")
    p("s_sub_u32 s3, s3, 4")
    helper(p)
    for l in COLD: p(l)
    p("L_end:")
    p("s_endpgm")
    return KN, p.finish(), 256, 0, (256, 512, 163840)

def final_reduce(p, wv8, RB):
    PITCH = 272; SLAB = 64*PITCH
    S = RB["S"]; lr = RB["lr"]; Hh = RB["H"]; O = RB["O"]; T = RB["T"]; go_ = RB["go"]
    for hf in range(2):
        for w in range(4):
            b = S[hf][w]
            p(f"ds_read_b128 v[{b}:{b+3}], v{lr} offset:{w*SLAB + hf*16}")
    for hf in range(2):
        p(f"s_waitcnt vmcnt(0) lgkmcnt({4 - 4*hf})")
        b = S[hf]
        for i in range(4):
            p(f"v_add_f32 v{b[0]+i}, v{b[0]+i}, v{b[1]+i}")
            p(f"v_add_f32 v{b[2]+i}, v{b[2]+i}, v{b[3]+i}")
            p(f"v_add_f32 v{b[0]+i}, v{b[0]+i}, v{b[2]+i}")
        for q in range(2):
            y = b[0]+2*q; hreg = Hh+2*hf+q
            p(f"v_cvt_pk_bf16_f32 v{y+1}, v{y}, v{y+1}")
            p(f"v_lshlrev_b32 v{y}, 16, v{y+1}")
            p(f"v_and_b32 v{y+1}, 0xffff0000, v{y+1}")
            p(f"v_lshlrev_b32 v{T}, 16, v{hreg}")
            p(f"v_and_b32 v{T+1}, 0xffff0000, v{hreg}")
            p(f"v_add_f32 v{y}, v{y}, v{T}")
            p(f"v_add_f32 v{y+1}, v{y+1}, v{T+1}")
            p(f"v_cvt_pk_bf16_f32 v{O+2*hf+q}, v{y}, v{y+1}")
    p(f"global_store_dwordx4 v{go_}, v[{O}:{O+3}], s[44:45]")
    p("s_endpgm")

def final_setup(p, wv8, RB):
    PITCH = 272
    lr = RB["lr"]; go_ = RB["go"]; T = RB["T"]
    p(f"""v_lshrrev_b32 v{T}, 3, v2
    v_mul_u32_u24 v{lr}, {PITCH}, v{T}
    v_and_b32 v{T+1}, 7, v2
    v_lshl_add_u32 v{lr}, v{T+1}, 5, v{lr}
    s_mul_i32 s8, {wv8}, {8*PITCH}
    v_add_u32 v{lr}, s8, v{lr}
    v_lshlrev_b32 v{go_}, 4, v{T+1}
    v_bfe_u32 v{T+1}, v2, 3, 1
    v_lshl_add_u32 v{go_}, v{T+1}, 20, v{go_}
    v_lshrrev_b32 v{T+1}, 4, v2
    v_lshl_add_u32 v{go_}, v{T+1}, 18, v{go_}
    s_lshl_b32 s8, s36, 4
    s_and_b32 s9, s37, 8
    s_add_u32 s8, s8, s9
    s_add_u32 s8, s8, {wv8}
    s_lshl_b32 s8, s8, 10
    s_and_b32 s9, s37, 7
    s_lshl_b32 s9, s9, 7
    s_add_u32 s8, s8, s9""")
    add64(p, 44, 30, "s8")
    p(f"s_add_u32 s8, s8, {WS_H}")
    add64(p, 46, 34, "s8")

def main(p):
    R = RA(3)
    n = R(); g = R(); t0 = R(); t1 = R(); fn = R(); fg = R(); va = R(); la = R(); lb = R(); lc = R(); ga = R()
    ang = R(4); c = R(4); s = R(4)
    B1re = R(4); B1im = R(4); B2re = R(4); B2im = R(4); S2re = R(4); S2im = R(4); Tc = R(4); Ts = R(4)
    m32 = R(); cp = R(); cm = R(); selr = R(); seli = R(); wc = R(); wsn = R(); st_t = R(); st = R(4)
    FLr = R(4); X = [R(4), R(4)]; vx = R()
    W0 = R.n
    XA = R(4); XB = R(4); DAr = R(4); DAi = R(4); DBr = R(4); DBi = R(4)
    Pr = R(4); Pi = R(4); Mr = R(4); Mi = R(4); Er = R(4); Ei = R(4); Fr = R(4); Fi = R(4)
    p(f"""s_lshl_b32 s8, s3, 8
    s_add_u32 s8, s8, s38
    s_lshl_b32 s9, s8, 10
    v_lshlrev_b32 v{va}, 4, v2
    s_lshl_b32 s10, s3, 11
    s_add_u32 s10, s10, {L_X}
    s_mov_b32 m0, s10""")
    add64(p, 4, 16, "s9"); add64(p, 6, 4, "0x100000")
    p(f"global_load_lds_dwordx4 v{va}, s[4:5] nt")
    p("s_add_u32 m0, s10, 1024")
    p(f"global_load_lds_dwordx4 v{va}, s[6:7] nt")
    add64(p, 48, 34, WS_EP)
    p(f"v_mov_b32 v{t0}, 0")
    p(f"global_load_dword v{FLr}, v{t0}, s[48:49] sc1")
    p("s_setprio 1")
    p(f"""v_and_b32 v{n}, 15, v2
    v_lshrrev_b32 v{g}, 4, v2
    v_cvt_f32_u32 v{fn}, v{n}
    v_cvt_f32_u32 v{fg}, v{g}
    v_mul_f32 v{fn}, {fl(1/32)}, v{fn}
    v_mul_f32 v{fg}, 4.0, v{fg}
    v_mul_f32 v{ang}, v{fg}, v{fn}""")
    for i in range(1, 4): p(f"v_add_f32 v{ang+i}, v{ang+i-1}, v{fn}")
    for i in range(4):
        p(f"v_cos_f32 v{c+i}, v{ang+i}"); p(f"v_sin_f32 v{s+i}, v{ang+i}")
    p(f"v_cmp_eq_u32 s[50:51], 0, v{n}")
    p(f"v_lshlrev_b32 v{t1}, 31, v{n}")
    p(f"v_lshrrev_b32 v{m32}, 16, v{t1}")
    p(f"v_or_b32 v{t1}, v{t1}, v{m32}")
    p(f"v_mov_b32 v{m32}, 0xbf803f80")
    for i in range(2):
        p(f"v_cvt_pk_bf16_f32 v{B1re+i}, v{c+2*i}, v{c+2*i+1}")
        p(f"v_cvt_pk_bf16_f32 v{B1im+i}, -v{s+2*i}, -v{s+2*i+1}")
        p(f"v_cndmask_b32 v{B1im+i}, v{B1im+i}, v{m32}, s[50:51]")
        p(f"v_xor_b32 v{B1re+2+i}, v{t1}, v{B1re+i}")
        p(f"v_xor_b32 v{B1im+2+i}, v{t1}, v{B1im+i}")
    p(f"v_mov_b32 v{m32}, {fl(-32.0)}")
    p(f"v_cndmask_b32 v{m32}, 0, v{m32}, s[50:51]")
    for i in range(4):
        p(f"v_mul_f32 v{Ts+i}, {fl(1/16)}, v{ang+i}")
        p(f"v_cos_f32 v{Tc+i}, v{Ts+i}"); p(f"v_sin_f32 v{Ts+i}, v{Ts+i}")
    for i in range(4):
        p(f"v_add_f32 v{ang+i}, v{ang+i}, v{ang+i}")
        p(f"v_cos_f32 v{c+i}, v{ang+i}"); p(f"v_sin_f32 v{s+i}, v{ang+i}")
    for i in range(4):
        p(f"v_cvt_pk_bf16_f32 v{B2re+i}, v{c+i}, v{s+i}")
        p(f"v_cvt_pk_bf16_f32 v{B2im+i}, -v{s+i}, v{c+i}")
    p(f"""v_lshlrev_b32 v{t1}, 1, v{n}
    v_add_u32 v{t0}, 1, v{t1}
    v_cmp_gt_u32 s[52:53], 8, v{n}
    v_cndmask_b32 v{t1}, v{t1}, v{t0}, s[52:53]
    v_cvt_f32_u32 v{t0}, v{t1}
    v_mul_f32 v{t0}, {fl(1/32)}, v{t0}
    v_mul_f32 v{ang}, v{fg}, v{t0}""")
    for i in range(1, 4): p(f"v_add_f32 v{ang+i}, v{ang+i-1}, v{t0}")
    p(f"""v_mov_b32 v{selr}, 0x0c0c0100
    v_mov_b32 v{t1}, 0x01000c0c
    v_cndmask_b32 v{selr}, v{selr}, v{t1}, s[52:53]
    v_mov_b32 v{seli}, 0x0c0c0302
    v_mov_b32 v{t1}, 0x03020c0c
    v_cndmask_b32 v{seli}, v{seli}, v{t1}, s[52:53]""")
    for i in range(4):
        p(f"v_cos_f32 v{c+i}, v{ang+i}"); p(f"v_sin_f32 v{s+i}, v{ang+i}")
    for i in range(4):
        p(f"v_cvt_pk_bf16_f32 v{c+i}, v{c+i}, -v{s+i}")
        p(f"v_perm_b32 v{S2re+i}, v{c+i}, v{c+i}, v{selr}")
        p(f"v_perm_b32 v{S2im+i}, v{c+i}, v{c+i}, v{seli}")
    p(f"""v_cvt_f32_u32 v{wc}, s8
    v_mul_f32 v{wc}, {fl(1/2048)}, v{wc}
    v_sin_f32 v{wsn}, v{wc}
    v_cos_f32 v{wc}, v{wc}
    v_cmp_gt_u32 s[54:55], 16, v2
    v_cmp_gt_u32 s[56:57], 32, v2
    v_lshl_add_u32 v{la}, v2, 3, s10
    v_lshlrev_b32 v{vx}, 5, v{n}
    v_lshl_add_u32 v{vx}, v{g}, 3, v{vx}
    v_add_u32 v{lc}, s10, v{vx}
    s_mov_b32 s41, {L_A}
    s_mov_b32 s12, 0x3f803f80""")
    R2 = RA(R.n)
    M = [[[R2(4) for ri in range(2)] for xo in range(2)] for xi in range(2)]
    Fc = R2(4); Fs = R2(4)
    Ic = [R2(4), R2(4)]; Is = [R2(4), R2(4)]
    Oc = [R2(4), R2(4)]; Os = [R2(4), R2(4)]
    fo = R2(2); fi = R2(2); sg = R2(); v2a = R2(); v2s = R2(); lw1 = R2(); lw2 = R2(); lrd = R2(); vw = R2()
    assert R2.n <= 256, R2.n
    def p2_consts():
        p(f"""s_lshr_b32 s13, s3, 1
        s_and_b32 s14, s3, 1
        v_and_b32 v{t0}, 3, v2
        v_bfe_u32 v{t1}, v2, 2, 2
        v_lshl_add_u32 v{t0}, v{t0}, 3, v{t1}
        v_cvt_f32_u32 v{fo}, v{t0}
        v_add_f32 v{fo+1}, 4.0, v{fo}
        v_cvt_f32_u32 v{fi}, v{g}
        v_add_f32 v{fi+1}, 4.0, v{fi}
        v_lshlrev_b32 v{sg}, 29, v2
        v_and_b32 v{sg}, 0x80000000, v{sg}
        v_lshrrev_b32 v{t1}, 16, v{sg}
        v_or_b32 v{sg}, v{sg}, v{t1}""")
        for xo in range(2):
            p(f"v_mul_f32 v{t0}, {fl(1/32)}, v{fo+xo}")
            p(f"v_mul_f32 v{t1}, {fl(1/4)}, v{fo+xo}")
            for xi in range(2):
                p(f"v_mul_f32 v{ang}, v{fi+xi}, v{t0}")
                p(f"v_add_f32 v{ang+1}, v{ang}, v{t1}")
                for i in range(2):
                    p(f"v_cos_f32 v{c+i}, v{ang+i}"); p(f"v_sin_f32 v{s+i}, v{ang+i}")
                for i in range(2):
                    p(f"v_cvt_pk_bf16_f32 v{M[xi][xo][0]+i}, v{c+i}, v{s+i}")
                    p(f"v_cvt_pk_bf16_f32 v{M[xi][xo][1]+i}, -v{s+i}, v{c+i}")
                for i in range(2):
                    p(f"v_xor_b32 v{M[xi][xo][0]+2+i}, v{sg}, v{M[xi][xo][0]+i}")
                    p(f"v_xor_b32 v{M[xi][xo][1]+2+i}, v{sg}, v{M[xi][xo][1]+i}")
        p(f"""s_lshl_b32 s9, s13, 4
        s_lshl_b32 s11, s14, 2
        s_add_u32 s9, s9, s11
        v_add_u32 v{t0}, s9, v{g}
        v_cvt_f32_u32 v{t0}, v{t0}
        v_mul_f32 v{t0}, {fl(1/1024)}, v{t0}
        v_add_f32 v{t1}, {fl(8/1024)}, v{t0}""")
        for x in range(2):
            for q, tt in enumerate((t0, t1)):
                p(f"v_mul_f32 v{ang}, v{fo+x}, v{tt}")
                p(f"v_cos_f32 v{Fc+2*x+q}, v{ang}"); p(f"v_sin_f32 v{Fs+2*x+q}, v{ang}")
        p(f"""v_add_u32 v{t0}, s11, v{g}
        v_cvt_f32_u32 v{t0}, v{t0}
        v_mul_f32 v{t0}, {fl(1/1024)}, v{t0}""")
        for x in range(2):
            p(f"v_mul_f32 v{t1}, {fl(1/128)}, v{fo+x}")
            p(f"v_mul_f32 v{ang}, v{fo+x}, v{t0}")
            for r in range(4):
                if r: p(f"v_add_f32 v{ang}, v{ang}, v{t1}")
                p(f"v_cos_f32 v{Ic[x]+r}, v{ang}"); p(f"v_sin_f32 v{Is[x]+r}, v{ang}")
        p(f"""v_bfe_u32 v{t0}, v2, 1, 1
        v_bfe_u32 v{t1}, v2, 2, 2
        v_lshl_add_u32 v{v2a}, v{t0}, 3, v{t1}
        v_add_u32 v{v2a}, s9, v{v2a}
        v_lshl_add_u32 v{v2a}, v{g}, 5, v{v2a}
        v_cvt_f32_u32 v{ang+1}, v{v2a}
        v_and_b32 v{c}, 1, v2
        v_lshlrev_b32 v{v2s}, 5, v{t0}
        v_lshl_add_u32 v{v2s}, v{g}, 3, v{v2s}
        v_lshl_add_u32 v{v2s}, v{t1}, 1, v{v2s}
        v_add_u32 v{v2s}, v{v2s}, v{c}
        v_lshlrev_b32 v{v2s}, 4, v{v2s}
        v_cvt_f32_u32 v{c}, v{c}
        v_mul_f32 v{t0}, {fl(1/2048)}, v{c}
        v_mul_f32 v{t1}, {fl(1/8)}, v{c}""")
        for x in range(2):
            if x: p(f"v_add_f32 v{ang+1}, {fl(128.0)}, v{ang+1}")
            p(f"v_mul_f32 v{ang}, v{ang+1}, v{t0}")
            for r in range(4):
                if r: p(f"v_add_f32 v{ang}, v{ang}, v{t1}")
                p(f"v_cos_f32 v{Oc[x]+r}, v{ang}"); p(f"v_sin_f32 v{Os[x]+r}, v{ang}")
        p(f"""s_lshl_b32 s9, s14, 10
        s_lshl_b32 s11, s13, 3
        s_add_u32 s11, s11, s9
        s_add_u32 s11, s11, {L_X}
        v_add_u32 v{lw1}, s11, v{va}
        s_lshl_b32 s11, s3, 11
        s_add_u32 s11, s11, {L_X}
        v_add_u32 v{lrd}, s11, v{va}
        v_and_b32 v{lw2}, 0x3c, v2
        v_and_b32 v{t0}, 1, v2
        v_lshl_add_u32 v{lw2}, v{t0}, 1, v{lw2}
        v_lshlrev_b32 v{lw2}, 4, v{lw2}
        v_bfe_u32 v{t0}, v2, 1, 1
        v_lshl_add_u32 v{lw2}, v{t0}, 12, v{lw2}
        s_lshl_b32 s11, s13, 4
        s_add_u32 s11, s11, s9
        s_add_u32 s11, s11, {L_A}
        v_add_u32 v{lw2}, s11, v{lw2}""")
    p("; STAMP 0")
    p("s_waitcnt vmcnt(0)")
    p("; STAMP 1")
    p(f"ds_read_b64_tr_b16 v[{XA}:{XA+1}], v{la}")
    p(f"ds_read_b64_tr_b16 v[{XA+2}:{XA+3}], v{la} offset:512")
    p(f"ds_read_b64_tr_b16 v[{XB}:{XB+1}], v{la} offset:1024")
    p(f"ds_read_b64_tr_b16 v[{XB+2}:{XB+3}], v{la} offset:1536")
    for m in range(2):
        for ah in range(2): p(f"ds_read_b64 v[{X[m]+2*ah}:{X[m]+2*ah+1}], v{lc} offset:{1024*m + 512*ah}")
    p(f"v_readfirstlane_b32 s40, v{FLr}")
    p(f"""s_mul_i32 s11, s3, 1040
    s_add_u32 s11, s11, {L_A}
    v_add_u32 v{lb}, s11, v{va}
    s_add_u32 s40, s40, 1
    s_or_b32 s40, s40, 0xffff0000""")
    p("s_waitcnt lgkmcnt(6)")
    mf16(p, DAr, XA, B1re); mf16(p, DAi, XA, B1im)
    p("s_waitcnt lgkmcnt(4)")
    mf16(p, DBr, XB, B1re); mf16(p, DBi, XB, B1im)
    for q, Xq in ((0, XA), (2, XB)):
        for i in range(4):
            p(f"v_dot2_f32_bf16 v{st+q}, v{Xq+i}, s12, {'0' if i==0 else 'v%d'%(st+q)}")
            p(f"v_dot2_f32_bf16 v{st+q+1}, v{Xq+i}, v{Xq+i}, {'0' if i==0 else 'v%d'%(st+q+1)}")
    reduce4(p, st, st+1, st+2, st+3, st_t)
    ln_stats(p, st, st_t)
    p(f"v_mul_f32 v{st}, v{st}, v{st_t}")
    p(f"v_readlane_b32 s13, v{st_t}, 0")
    p(f"v_readlane_b32 s14, v{st_t}, 32")
    p(f"v_readlane_b32 s9, v{st}, 0")
    p(f"v_readlane_b32 s11, v{st}, 32")
    p(f"v_mul_f32 v{cp}, s9, v{m32}")
    p(f"v_fma_f32 v{cm}, -v{m32}, s11, v{cp}")
    p(f"v_fma_f32 v{cp}, v{m32}, s11, v{cp}")
    for i in range(4):
        p(f"v_fma_f32 v{Pr+i}, v{DAr+i}, s13, v{cp}")
        p(f"v_fma_f32 v{Mr+i}, v{DAr+i}, s13, v{cm}")
        p(f"v_mul_f32 v{Mi+i}, s13, v{DAi+i}")
        p(f"v_fma_f32 v{Pr+i}, v{DBr+i}, s14, v{Pr+i}")
        p(f"v_fma_f32 v{Mr+i}, -v{DBr+i}, s14, v{Mr+i}")
        p(f"v_fma_f32 v{Pi+i}, v{DBi+i}, s14, v{Mi+i}")
        p(f"v_fma_f32 v{Mi+i}, -v{DBi+i}, s14, v{Mi+i}")
    for i in range(4):
        cmul(p, f"v{DBr+i}", f"v{DBi+i}", f"v{Mr+i}", f"v{Mi+i}", f"v{Tc+i}", f"v{Ts+i}")
        p(f"v_cvt_pk_bf16_f32 v{XB+i}, v{DBr+i}, v{DBi+i}")
    mf16(p, Mr, XB, B2re); mf16(p, Mi, XB, B2im); mf16(p, Fr, XB, S2re); mf16(p, Fi, XB, S2im)
    for i in range(4):
        cmul(p, f"v{DAr+i}", f"v{DAi+i}", f"v{Pr+i}", f"v{Pi+i}", f"v{Tc+i}", f"v{Ts+i}")
        p(f"v_cvt_pk_bf16_f32 v{XA+i}, v{DAr+i}, v{DAi+i}")
    mf16(p, Pr, XA, B2re); mf16(p, Pi, XA, B2im); mf16(p, Er, XA, S2re); mf16(p, Ei, XA, S2im)
    p(f"v_cndmask_b32 v{Mr}, v{Mr}, v{Fr}, s[54:55]")
    p(f"v_cndmask_b32 v{Mi}, v{Mi}, v{Fi}, s[54:55]")
    for i in range(4):
        cmul(p, f"v{DBr+i}", f"v{DBi+i}", f"v{Mr+i}", f"v{Mi+i}", f"v{wc}", f"v{wsn}")
        p(f"v_cvt_pk_bf16_f32 v{XB+i}, v{DBr+i}, v{DBi+i}")
    p(f"ds_write_b128 v{lb}, v[{XB}:{XB+3}] offset:{4096+64}")
    p(f"v_cndmask_b32 v{Pr}, v{Pr}, v{Er}, s[54:55]")
    p(f"v_cndmask_b32 v{Pi}, v{Pi}, v{Ei}, s[54:55]")
    for i in range(4): p(f"v_cvt_pk_bf16_f32 v{XA+i}, v{Pr+i}, v{Pi+i}")
    p(f"ds_write_b128 v{lb}, v[{XA}:{XA+3}]")
    p(f"""v_mov_b32 v{t0}, {L_FLAG}
    v_mov_b32 v{t1}, 1
    s_mov_b64 exec, 1
    ds_add_u32 v{t0}, v{t1}
    s_mov_b64 exec, -1
    v_and_b32 v{lc}, 1, v0
    v_mul_u32_u24 v{lc}, 4160, v{lc}
    v_bfe_u32 v{t1}, v0, 1, 1
    v_mul_u32_u24 v{t1}, 2080, v{t1}
    v_add_u32 v{lc}, v{lc}, v{t1}
    v_and_b32 v{t1}, 0xfc, v0
    v_add3_u32 v{lc}, v{lc}, v{t1}, s41
    v_lshlrev_b32 v{ga}, 4, v0
    s_lshl_b32 s9, s38, 14
    s_add_u32 s9, s9, {WS_XA+4096}""")
    add64(p, 4, 34, "s9"); add64(p, 6, 4, 8192)
    SO = [DAr, DAi, DBr, DBi]
    for q in range(4):
        p(f"v_mov_b32 v{SO[q]+1}, s40"); p(f"v_mov_b32 v{SO[q]+3}, s40")
    p("; STAMP 11")
    L = lab("cnt")
    p(f"s_mov_b32 s15, {SPIN*16}")
    p(f"{L}:")
    p(f"ds_read_b32 v{t1}, v{t0}")
    p("s_sub_u32 s15, s15, 1"); p("s_cbranch_scc1 L_end")
    p("s_waitcnt lgkmcnt(0)")
    p(f"v_cmp_ne_u32 vcc, 8, v{t1}")
    p(f"s_cbranch_vccnz {L}")
    for q in range(4):
        p(f"ds_read_b32 v{SO[q]}, v{lc} offset:{q*256}")
        p(f"ds_read_b32 v{SO[q]+2}, v{lc} offset:{q*256+1040}")
    for q in range(4):
        p(f"s_waitcnt lgkmcnt({6-2*q})")
        p(f"global_store_dwordx4 v{ga}, v[{SO[q]}:{SO[q]+3}], s[{4+2*(q>>1)}:{5+2*(q>>1)}] offset:{(q&1)*4096-4096} sc1")
    p("; STAMP 2")
    C1re = B1re; C1im = B1im; S1re = B2re; S1im = B2im; B3 = [S2re, S2im]
    def p3_consts():
        p(f"v_mul_f32 v{ang}, v{fg}, v{fn}")
        for i in range(1, 4): p(f"v_add_f32 v{ang+i}, v{ang+i-1}, v{fn}")
        for i in range(4):
            p(f"v_cos_f32 v{c+i}, v{ang+i}"); p(f"v_sin_f32 v{s+i}, v{ang+i}")
        p(f"v_lshlrev_b32 v{t0}, 31, v{n}")
        p(f"v_xor_b32 v{t0}, 0x3f803f80, v{t0}")
        for i in range(4): p(f"v_cvt_pk_bf16_f32 v{B3[0]+i}, v{c+i}, -v{s+i}")
        p(f"v_cndmask_b32 v{B3[0]}, v{B3[0]}, v{t0}, s[54:55]")
        for i in range(4):
            if i & 1: p(f"v_xor_b32 v{B3[1]+i}, 0x80008000, v{B3[0]+i}")
            else: p(f"v_mov_b32 v{B3[1]+i}, v{B3[0]+i}")
        for i in range(4):
            p(f"v_mul_f32 v{Tc+i}, {fl(2.0**-19)}, v{Tc+i}"); p(f"v_mul_f32 v{Ts+i}, {fl(2.0**-19)}, v{Ts+i}")
        for i in range(4):
            p(f"v_add_f32 v{ang+i}, v{ang+i}, v{ang+i}")
            p(f"v_cos_f32 v{c+i}, v{ang+i}"); p(f"v_sin_f32 v{s+i}, v{ang+i}")
        for i in range(4):
            p(f"v_cvt_pk_bf16_f32 v{C1re+i}, v{c+i}, -v{s+i}")
            p(f"v_cvt_pk_bf16_f32 v{C1im+i}, v{s+i}, v{c+i}")
        for i in range(4):
            p(f"v_add_f32 v{ang+i}, v{ang+i}, v{fn}")
            p(f"v_cos_f32 v{c+i}, v{ang+i}"); p(f"v_sin_f32 v{s+i}, v{ang+i}")
        p(f"v_lshlrev_b32 v{t0}, 15, v{n}")
        p(f"v_and_b32 v{t0}, 0x8000, v{t0}")
        p(f"v_or_b32 v{t0}, 0x3f00, v{t0}")
        for i in range(4):
            p(f"v_cvt_pk_bf16_f32 v{S1im+i}, v{c+i}, -v{s+i}")
            p(f"v_cndmask_b32 v{S1im+i}, 0, v{S1im+i}, s[56:57]")
            p(f"v_cndmask_b32 v{S1re+i}, v{C1re+i}, 0, s[56:57]")
        p(f"v_cmp_eq_u32 vcc, 2, v{g}")
        p(f"v_cndmask_b32 v{S1re}, v{S1re}, v{t0}, vcc")
    Rw = RA(W0)
    In = [Rw(4), Rw(4)]; poolA = [Rw(4) for _ in range(4)]; P = [Rw(4), Rw(4)]; Wr = [Rw(4), Rw(4)]; Wi = [Rw(4), Rw(4)]
    assert poolA == SO
    D = [[poolA[0], poolA[1]], [poolA[2], poolA[3]]]
    assert Rw.n <= R.n
    Rx = RA(R2.n)
    Wp = [[B1re, B1im], [B2re, B2im]]; Gx = [[Rx(4), Rx(4)], [Rx(4), Rx(4)]]
    assert Rx.n <= 256, Rx.n
    E = [cp, cm]
    p(f"""s_lshl_b32 s9, s39, 14
    s_lshl_b32 s11, s3, 12
    s_add_u32 s9, s9, s11
    s_add_u32 s9, s9, {WS_WP}""")
    add64(p, 60, 34, "s9")
    p(f"""s_lshl_b32 s9, s39, 13
    s_lshl_b32 s11, s3, 11
    s_add_u32 s9, s9, s11
    s_add_u32 s9, s9, {WS_XB}""")
    add64(p, 62, 34, "s9")
    p(f"""s_lshr_b32 s13, s3, 1
    s_and_b32 s14, s3, 1
    s_lshl_b32 s9, s13, 18
    s_lshl_b32 s11, s14, 16
    s_add_u32 s9, s9, s11
    s_lshl_b32 s11, s39, 6
    s_add_u32 s9, s9, s11
    s_add_u32 s9, s9, {WS_XA}
    v_bfe_u32 v{t1}, v2, 2, 2
    v_lshl_add_u32 v{vw}, v{g}, 5, v{t1}
    v_lshlrev_b32 v{vw}, 14, v{vw}
    v_and_b32 v{t1}, 3, v2
    v_lshl_add_u32 v{vw}, v{t1}, 4, v{vw}
    v_add_u32 v{ga}, 0x20000, v{vw}""")
    add64(p, 4, 34, "s9"); add64(p, 6, 4, "0x200000")
    p2_consts()
    p("; STAMP 3")
    xl = [f"global_load_dwordx4 v[{Gx[x][ab]}:{Gx[x][ab]+3}], v{(vw, ga)[ab]}, s[{4+2*x}:{5+2*x}] sc1" for x in range(2) for ab in range(2)]
    wl = [f"global_load_dwordx4 v[{Wp[x][h]}:{Wp[x][h]+3}], v{la}, s[60:61] offset:{x*2048+h*16} sc1" for x in range(2) for h in range(2)]
    p(f"v_lshlrev_b32 v{la}, 5, v2")
    poll(p, xl, [Gx[x][ab]+i for x in range(2) for ab in range(2) for i in (1, 3)], t0, tag=t1)
    for l in wl: p(l)
    p("; STAMP 4")
    dp = "quad_perm:[2,3,0,1] row_mask:0xf bank_mask:0xf"
    p("s_mov_b32 vcc_lo, 0x33333333"); p("s_mov_b32 vcc_hi, 0x33333333")
    for x in range(2):
        for e in range(2): p(f"v_cndmask_b32_dpp v{In[x]+e}, v{Gx[x][1]+2*e}, v{Gx[x][0]+2*e}, vcc {dp}")
    p("s_not_b64 vcc, vcc")
    for x in range(2):
        for e in range(2): p(f"v_cndmask_b32_dpp v{In[x]+2+e}, v{Gx[x][0]+2*e}, v{Gx[x][1]+2*e}, vcc {dp}")
    def w_ready():
        poll(p, wl, [Wp[x][h]+i for x in range(2) for h in range(2) for i in (1, 3)], t0, pre_issued=True, tag=t1)
        for x in range(2):
            for r in range(4):
                for dst, h in ((Wr, 0), (Wi, 1)):
                    if r & 1: p(f"v_and_b32 v{dst[x]+r}, 0xffff0000, v{Wp[x][h]+(r&2)}")
                    else: p(f"v_lshlrev_b32 v{dst[x]+r}, 16, v{Wp[x][h]+(r&2)}")
    def stage1():
        for x in range(2):
            for ri in range(2): mf16(p, D[x][ri], In[0], M[0][x][ri])
            for ri in range(2): mf16(p, D[x][ri], In[1], M[1][x][ri], D[x][ri])
    def stage2(off, mid=None):
        p("s_waitcnt lgkmcnt(0)")
        p("s_barrier")
        for x in range(2): p(f"ds_read_b128 v[{P[x]}:{P[x]+3}], v{lrd} offset:{off + x*1024}")
        for hb in range(2):
            p(f"s_waitcnt lgkmcnt({1-hb})")
            for x in range(2):
                for ri in range(2): mf16(p, D[x][ri], M[hb][x][ri], P[hb], D[x][ri] if hb else None)
        if mid: mid()
    stage1()
    for x in range(2):
        for r in range(4):
            q = 2*x + (r >> 1)
            cmul(p, f"v{E[0]}", f"v{E[1]}", f"v{D[x][0]+r}", f"v{D[x][1]+r}", f"v{Fc+q}", f"v{Fs+q}")
            p(f"v_cvt_pk_bf16_f32 v{P[x] + (r&1)*2 + (r>>1)}, v{E[0]}, v{E[1]}")
        for m in range(2): p(f"ds_write_b64 v{lw1}, v[{P[x]+2*m}:{P[x]+2*m+1}] offset:{(2*m+x)*2048}")
    stage2(0, w_ready)
    for x in range(2):
        for r in range(4):
            cmul(p, f"v{E[0]}", f"v{E[1]}", f"v{D[x][0]+r}", f"v{D[x][1]+r}", f"v{Wr[x]+r}", f"v{Wi[x]+r}", neg=True)
            p(f"v_cvt_pk_bf16_f32 v{In[x]+r}, v{E[1]}, v{E[0]}")
    stage1()
    for x in range(2):
        for r in range(4):
            cmul(p, f"v{E[0]}", f"v{E[1]}", f"v{D[x][0]+r}", f"v{D[x][1]+r}", f"v{Ic[x]+r}", f"v{Is[x]+r}")
            p(f"v_cvt_pk_bf16_f32 v{P[x]+r}, v{E[0]}, v{E[1]}")
        p(f"ds_write_b128 v{lw2}, v[{P[x]}:{P[x]+3}] offset:{x*2048}")
    stage2(L_A - L_X)
    for x in range(2):
        for r in range(4):
            cmul(p, f"v{E[0]}", f"v{E[1]}", f"v{D[x][0]+r}", f"v{D[x][1]+r}", f"v{Oc[x]+r}", f"v{Os[x]+r}")
            p(f"v_cvt_pk_bf16_f32 v{In[x]+r}, v{E[1]}, v{E[0]}")
        p(f"global_store_dwordx4 v{v2s}, v[{In[x]}:{In[x]+3}], s[62:63] offset:{x*1024} sc1")
    p("; STAMP 5")
    R3 = RA(R.n)
    G = [R3(4), R3(4)]; V = [R3(4), R3(4)]
    D3 = [[R3(4), R3(4)], [R3(4), R3(4)]]; Sp = [[R3(4), R3(4)], [R3(4), R3(4)]]; Y = [[R3(4), R3(4)], [R3(4), R3(4)]]
    vl = lb; vg = lc; lw3 = ga
    TS = 2304
    p("s_lshl_b32 s9, s8, 10")
    Lx = lab("ne")
    p(f"""s_or_b32 s11, s2, s3
    s_cmp_eq_u32 s11, 0
    s_cbranch_scc0 {Lx}
    v_mov_b32 v{t0}, 0
    v_mov_b32 v{t1}, s40
    s_mov_b64 exec, 1
    global_store_dword v{t0}, v{t1}, s[48:49] sc1
    s_mov_b64 exec, -1""")
    p(f"{Lx}:")
    p(f"s_add_u32 s9, s9, {WS_H}")
    add64(p, 58, 34, "s9"); add64(p, 60, 58, "0x100000")
    p(f"""s_bfe_u32 s9, s38, 0x10004
    s_lshl_b32 s9, s9, 12
    s_bfe_u32 s11, s38, 0x10002
    s_lshl_b32 s11, s11, 11
    s_add_u32 s9, s9, s11
    s_bfe_u32 s11, s38, 0x10007
    s_lshl_b32 s11, s11, 10
    s_add_u32 s9, s9, s11
    s_bfe_u32 s11, s38, 0x10003
    s_lshl_b32 s11, s11, 9
    s_add_u32 s9, s9, s11
    s_bfe_u32 s11, s38, 0x20005
    s_lshl_b32 s11, s11, 7
    s_add_u32 s9, s9, s11
    s_and_b32 s11, s38, 3
    s_lshl_b32 s11, s11, 5
    s_add_u32 s9, s9, s11
    s_lshl_b32 s11, s3, 19
    s_add_u32 s9, s9, s11
    s_add_u32 s9, s9, {WS_XB}
    v_lshrrev_b32 v{vg}, 1, v2
    v_lshlrev_b32 v{vg}, 13, v{vg}
    v_and_b32 v{t0}, 1, v2
    v_lshl_add_u32 v{vg}, v{t0}, 4, v{vg}""")
    add64(p, 4, 34, "s9"); add64(p, 6, 4, "0x40000")
    p(f"""v_mul_u32_u24 v{lw3}, 1088, v{t0}
    v_bfe_u32 v{t0}, v2, 1, 2
    v_lshl_add_u32 v{lw3}, v{t0}, 4, v{lw3}
    v_bfe_u32 v{t0}, v2, 3, 2
    v_lshl_add_u32 v{lw3}, v{t0}, 2, v{lw3}
    v_lshrrev_b32 v{t0}, 5, v2
    v_lshl_add_u32 v{lw3}, v{t0}, 8, v{lw3}
    s_lshl_b32 s11, s3, 6
    s_add_u32 s11, s11, {L_X}
    v_add_u32 v{lw3}, s11, v{lw3}
    s_mul_i32 s11, s3, {TS}
    s_add_u32 s11, s11, {L_X}
    v_add_u32 v{lrd}, s11, v{va}""")
    p(f"""v_bfe_u32 v{vl}, v2, 1, 4
    v_lshlrev_b32 v{vl}, 7, v{vl}
    v_lshrrev_b32 v{t0}, 5, v2
    v_lshl_add_u32 v{vl}, v{t0}, 5, v{vl}
    v_and_b32 v{t0}, 1, v2
    v_lshl_add_u32 v{vl}, v{t0}, 4, v{vl}
    s_lshl_b32 s9, s38, 13
    s_lshr_b32 s11, s3, 1
    s_lshl_b32 s11, s11, 12
    s_add_u32 s9, s9, s11
    s_and_b32 s11, s3, 1
    s_lshl_b32 s11, s11, 6
    s_add_u32 s9, s9, s11
    s_add_u32 s9, s9, {WS_LN2}""")
    add64(p, 62, 34, "s9")
    p3_consts()
    gl = [f"global_load_dwordx4 v[{G[x]}:{G[x]+3}], v{vg}, s[{4+2*x}:{5+2*x}] sc1" for x in range(2)]
    for l in gl: p(l)
    XF = lambda m, ah: Wr[0] + 8*m + 4*ah
    for m in range(2):
        for ah in range(2):
            for q in range(2):
                p(f"v_lshlrev_b32 v{XF(m,ah)+2*q}, 16, v{X[m]+2*ah+q}")
                p(f"v_and_b32 v{XF(m,ah)+2*q+1}, 0xffff0000, v{X[m]+2*ah+q}")
    poll(p, gl, [G[x]+i for x in range(2) for i in (1, 3)], t0, pre_issued=True)
    p("; STAMP 6")
    for x in range(2):
        for q in range(2):
            p(f"ds_write2st64_b32 v{lw3}, v{G[x]+2*q}, v{G[x]+2*q+1} offset0:{2*x + 18*q} offset1:{2*x + 18*q + 9}")
    p("s_waitcnt lgkmcnt(0)")
    p("s_barrier")
    for m in range(2): p(f"ds_read_b128 v[{V[m]}:{V[m]+3}], v{lrd} offset:{m*1088}")
    for m in range(2):
        p(f"s_waitcnt lgkmcnt({1-m})")
        mf16(p, D3[m][0], V[m], C1re); mf16(p, D3[m][1], V[m], C1im); mf16(p, Sp[m][0], V[m], S1re); mf16(p, Sp[m][1], V[m], S1im)
    for m in range(2):
        for ri in range(2): p(f"v_cndmask_b32 v{D3[m][ri]}, v{D3[m][ri]}, v{Sp[m][ri]}, s[54:55]")
    for ri in range(2):
        for r in range(4):
            p(f"v_add_f32 v{Sp[0][ri]+r}, v{D3[0][ri]+r}, v{D3[1][ri]+r}")
            p(f"v_sub_f32 v{Sp[1][ri]+r}, v{D3[0][ri]+r}, v{D3[1][ri]+r}")
    for m in range(2):
        for r in range(4):
            cmul(p, f"v{E[0]}", f"v{E[1]}", f"v{Sp[m][0]+r}", f"v{Sp[m][1]+r}", f"v{Tc+r}", f"v{Ts+r}", neg=True)
            p(f"v_cvt_pk_bf16_f32 v{V[m]+r}, v{E[0]}, v{E[1]}")
        mf16(p, Y[m][0], V[m], B3[0]); mf16(p, Y[m][1], V[m], B3[1])
    for m in range(2):
        for ah in range(2):
            for q in range(2):
                y = Y[m][ah]+2*q; d = XF(m, ah)+2*q; hp = X[m]+2*ah+q
                p(f"v_cvt_pk_bf16_f32 v{y+1}, v{y}, v{y+1}")
                p(f"v_lshlrev_b32 v{y}, 16, v{y+1}")
                p(f"v_and_b32 v{y+1}, 0xffff0000, v{y+1}")
                p(f"v_add_f32 v{y}, v{y}, v{d}")
                p(f"v_add_f32 v{y+1}, v{y+1}, v{d+1}")
                p(f"v_cvt_pk_bf16_f32 v{hp}, v{y}, v{y+1}")
        for i in range(4):
            p(f"v_dot2_f32_bf16 v{st+2*m}, v{X[m]+i}, s12, {'0' if i==0 else 'v%d'%(st+2*m)}")
            p(f"v_dot2_f32_bf16 v{st+2*m+1}, v{X[m]+i}, v{X[m]+i}, {'0' if i==0 else 'v%d'%(st+2*m+1)}")
    for m in range(2):
        for ah in range(2):
            for q in range(2):
                p(f"v_lshlrev_b32 v{D3[m][ah]+2*q}, 16, v{X[m]+2*ah+q}")
                p(f"v_and_b32 v{D3[m][ah]+2*q+1}, 0xffff0000, v{X[m]+2*ah+q}")
    reduce4(p, st, st+1, st+2, st+3, st_t)
    ln_stats(p, st, st_t)
    p(f"v_readlane_b32 s9, v{st}, 0")
    p(f"v_readlane_b32 s11, v{st}, 32")
    p(f"v_readlane_b32 s13, v{st_t}, 0")
    p(f"v_readlane_b32 s14, v{st_t}, 32")
    for m in range(2):
        for ah in range(2):
            for q in range(2):
                d = D3[m][ah]+2*q; sm = (9, 11)[m]
                p(f"v_subrev_f32 v{d}, s{sm}, v{d}")
                p(f"v_subrev_f32 v{d+1}, s{sm}, v{d+1}")
                p(f"v_cvt_pk_bf16_f32 v{d+1}, v{d}, v{d+1}")
                p(f"v_lshlrev_b32 v{d}, 16, v{d+1}")
                p(f"v_and_b32 v{d+1}, 0xffff0000, v{d+1}")
                p(f"v_mul_f32 v{d}, s{13+m}, v{d}")
                p(f"v_mul_f32 v{d+1}, s{13+m}, v{d+1}")
                p(f"v_cvt_pk_bf16_f32 v{V[m]+2*ah+q}, v{d}, v{d+1}")
    for i in range(4): p(f"v_permlane32_swap_b32 v{V[0]+i}, v{V[1]+i}")
    for m in range(2): p(f"global_store_dwordx4 v{vl}, v[{V[m]}:{V[m]+3}], s[62:63] offset:{2048*m} sc1")
    for m in range(2):
        for ah in range(2):
            p(f"global_store_dwordx2 v{vx}, v[{X[m]+2*ah}:{X[m]+2*ah+1}], s[{58+2*m}:{59+2*m}] offset:{512*ah} sc1")
    p("; STAMP 7")
    order, unit_of, units, addr, bars, refill, first, last = p4_plan()
    NF = len(order)
    R4 = RA(3)
    vA = R4(); vo = R4(); u0 = R4(); u1 = R4(); lbs = [vo, R4(), R4()]
    E4 = [R4() for _ in range(8)]
    O = [R4(4), R4(4)]
    Wf = [R4(4) for _ in range(PF)]
    accb = [R4(16) for _ in range(4)]
    A = [R4(4) for _ in range(32)]
    assert R4.n <= 256
    acc = {0: accb[0], 1: accb[1], 2: accb[2], 3: accb[3], 4: accb[0], 5: accb[1], 6: accb[2]}
    p(f"""v_bfe_u32 v{u0}, v2, 2, 3
    v_lshlrev_b32 v{vA}, 12, v{u0}
    v_and_b32 v{u0}, 3, v2
    v_lshl_add_u32 v{vA}, v{u0}, 5, v{vA}
    v_lshrrev_b32 v{u0}, 5, v2
    v_lshl_add_u32 v{vA}, v{u0}, 4, v{vA}
    s_lshl_b32 s12, s36, 2
    s_add_u32 s12, s12, s3
    s_lshl_b32 s13, s12, 15
    s_add_u32 s13, s13, {WS_LN2}
    v_lshlrev_b32 v{vo}, 4, v2""")
    add64(p, 4, 34, "s13")
    p(f"""s_mul_i32 s13, s12, 112
    s_mul_i32 s14, s37, 7
    s_add_u32 s13, s13, s14
    s_lshl_b32 s13, s13, 10
    s_add_u32 s13, s13, {WS_HH+3072}""")
    add64(p, 6, 34, "s13")
    for q in (1, 2): p(f"v_add_u32 v{lbs[q]}, {q*0x10000}, v{vo}")
    al = lambda k: f"global_load_dwordx4 v[{A[k]}:{A[k]+3}], v{vA}, s[4:5] offset:{k*128} sc1"
    def rd(i):
        t, k = order[i]
        aa = addr[unit_of(t, k)] + (k & 3)*1024
        p(f"ds_read_b128 v[{Wf[i%PF]}:{Wf[i%PF]+3}], v{lbs[aa>>16]} offset:{aa & 0xffff}")
    def epi(t):
        b = acc[t]; o = O[t & 1]; L = []
        for h in range(2):
            e = E4[4*h:4*h+4]
            for i in range(4): L.append(f"v_mul_f32 v{e[i]}, {fl(-1.4426950408889634)}, v{b+4*h+i}")
            for i in range(4): L.append(f"v_exp_f32 v{e[i]}, v{e[i]}")
            for i in range(4): L.append(f"v_add_f32 v{e[i]}, 1.0, v{e[i]}")
            for i in range(4): L.append(f"v_rcp_f32 v{e[i]}, v{e[i]}")
            for i in range(4): L.append(f"v_mul_f32 v{e[i]}, v{e[i]}, v{b+8+4*h+i}")
            for i in range(2): L.append(f"v_cvt_pk_bf16_f32 v{o+2*h+i}, v{e[2*i]}, v{e[2*i+1]}")
        L.append(f"global_store_dwordx4 v{vo}, v[{o}:{o+3}], s[6:7] offset:{t*1024-3072} sc1")
        L.append(("pub", t))
        return L
    p("s_barrier")
    nrd = 0
    while nrd < PF - 1: rd(nrd); nrd += 1
    first_set = list(range(8)) + [16]
    poll(p, [al(k) for k in first_set], [A[k]+i for k in first_set for i in (1, 3)], u0)
    p("; STAMP 8")
    rest_k = [k for k in range(8, 32) if k != 16]
    issued = []
    checked = set(first_set)
    groups = [[8,9,10,11],[12,13,14,15],[17,18,19],[20,21,22,23],[24,25,26,27],[28,29,30,31]]
    tlast = {}
    for i, (t, k) in enumerate(order): tlast[t] = i
    pend = []
    nst = 0
    cost = lambda x: 2 if ("v_exp" in x or "v_rcp" in x) else 1
    for i, (t, k) in enumerate(order):
        if i in bars and i > 0:
            p("s_barrier")
        if nrd < NF: rd(nrd); nrd += 1
        if rest_k:
            kk = rest_k.pop(0); p(al(kk)); issued.append(kk)
        if k not in checked:
            grp = [gq for gq in groups if k in gq][0]
            after = len(issued) - 1 - issued.index(grp[-1]) + nst
            poll(p, [al(q) for q in grp], [A[q]+e for q in grp for e in (1, 3)], u0, pre_issued=True, wait=f"s_waitcnt vmcnt({after})")
            checked |= set(grp)
        p(f"s_waitcnt lgkmcnt({nrd - 1 - i})")
        b = acc[t]
        p(f"{MF32} v[{b}:{b+15}], v[{Wf[i%PF]}:{Wf[i%PF]+3}], v[{A[k]}:{A[k]+3}], {'0' if k == 0 else 'v[%d:%d]'%(b,b+15)}")
        budget = 3
        while pend and pend[0][0] <= i and budget > 0:
            x = pend.pop(0)[1]
            if isinstance(x, tuple): pub(p, u0, u1); budget -= 1
            else:
                p(x); budget -= cost(x)
                if x.startswith("global_store"): nst += 1
        if tlast[t] == i: pend += [(i + 2, x) for x in epi(t)]
        if i + 1 < NF and order[i+1][1] == 0 and order[i+1][0] >= 4:
            prev = order[i+1][0] - 4
            assert not any(isinstance(x, tuple) and x[1] <= prev for _, x in pend), (i, prev)
    p("; STAMP 9")
    for _, x in pend:
        if isinstance(x, tuple): pub(p, u0, u1)
        else: p(x)
    p("s_setprio 0")
    RB = dict(S=[[A[4*hf+w] for w in range(4)] for hf in range(2)], lr=vA, H=A[8], O=A[9], T=A[10], go=vo)
    p("s_waitcnt vmcnt(0)")
    final_setup(p, "s3", RB)
    p("s_barrier")
    p(f"global_load_dwordx4 v[{RB['H']}:{RB['H']+3}], v{RB['go']}, s[46:47] sc1")
    p("s_barrier")
    final_reduce(p, "s3", RB)

def pub(p, a, b):
    p(f"v_mov_b32 v{a}, {L_FLAG}")
    p(f"v_mov_b32 v{b}, 1")
    p("s_mov_b64 exec, 1")
    p(f"ds_add_u32 v{a}, v{b} offset:4")
    p("s_mov_b64 exec, -1")

def helper(p):
    order, unit_of, units, addr, bars, refill, first, last = p4_plan()
    R = RA(3)
    va = R(); t0 = R(); t1 = R(); vq = R()
    SE = R(4)
    keep = R.n
    t2 = R(); vwp = R(2); vwm = R(2); mir = R(); lr = R(); ep = R(); sd = R(); so = R(); lg = R(); lt = R(); lp = R(); lh = R(); t3 = R()
    WL = [R(4), R(4)]; WT = [R(4), R(4)]; WO = [R(4) for _ in range(4)]
    F = [R(4), R(4)]; GF = [R(4) for _ in range(4)]
    p("s_setprio 2")
    p(f"""v_lshlrev_b32 v{va}, 4, v2
    s_mul_i32 s58, s3, 12288
    s_lshl_b32 s9, s3, 11
    s_lshl_b32 s10, s39, 13
    s_add_u32 s10, s10, s9
    s_add_u32 s10, s10, {WS_XB}""")
    add64(p, 6, 34, "s10")
    add64(p, 48, 34, WS_EP)
    for i in range(4): p(f"v_mov_b32 v{SE+i}, -1")
    p(f"v_mov_b32 v{t0}, 0")
    p(f"global_load_dword v{ep}, v{t0}, s[48:49] sc1")
    for i in range(2): p(f"global_store_dwordx4 v{va}, v[{SE}:{SE+3}], s[6:7] offset:{i*1024} sc1")
    p(f"""s_and_b32 s41, s38, 15
    s_bfe_u32 s8, s38, 0x30004
    s_lshl_b32 s8, s8, 6
    s_add_u32 s41, s41, s8
    s_lshl_b32 s8, s3, 4
    s_add_u32 s43, s41, s8
    s_mul_i32 s8, s43, 514
    s_lshr_b32 s59, s38, 7
    s_lshl_b32 s9, s59, 8
    s_add_u32 s8, s8, s9
    s_add_u32 s8, s8, 2
    v_lshrrev_b32 v{t0}, 4, v2
    v_mul_u32_u24 v{t2}, {512*514}, v{t0}
    v_and_b32 v{t0}, 15, v2
    v_lshl_add_u32 v{t2}, v{t0}, 4, v{t2}
    v_add_u32 v{t2}, s8, v{t2}""")
    p(f"global_load_dwordx4 v[{WL[0]}:{WL[0]+3}], v{t2}, s[18:19] nt")
    p(f"global_load_dwordx4 v[{WL[1]}:{WL[1]+3}], v{t2}, s[20:21] nt")
    p("s_setprio 0")
    p(f"""s_cmp_eq_u32 s43, 0
    s_cselect_b32 s8, 4, 3
    v_bfe_u32 v{t0}, v2, 2, 2
    v_sub_u32 v{t1}, s8, v{t0}
    v_and_b32 v{t1}, 3, v{t1}
    v_and_b32 v{t2}, 16, v2
    v_cmp_ne_u32 vcc, 0, v{t2}
    v_cndmask_b32 v{t0}, v{t0}, v{t1}, vcc
    v_mov_b32 v{t1}, 0x80008000
    v_cndmask_b32 v{mir}, 0, v{t1}, vcc
    v_lshlrev_b32 v{lt}, 8, v{t0}
    v_lshrrev_b32 v{t0}, 4, v2
    v_lshl_add_u32 v{lt}, v{t0}, 5, v{lt}
    v_and_b32 v{t0}, 3, v2
    v_lshl_add_u32 v{lt}, v{t0}, 3, v{lt}
    v_add_u32 v{lt}, s58, v{lt}
    s_lshl_b32 s8, s3, 4
    s_add_u32 s8, s8, {L_WP}
    v_lshl_add_u32 v{lp}, v2, 6, s8
    s_lshl_b32 s8, s3, 11
    s_add_u32 s8, s8, {L_WP}
    v_lshl_add_u32 v{lr}, v2, 3, s8""")
    for dst, m in ((vwp, 0), (vwm, 1)):
        p(f"""v_and_b32 v{t0}, 6, v2
        v_lshl_add_u32 v{t0}, v{t0}, 3, s41""")
        if m: p(f"v_sub_u32 v{t0}, 0, v{t0}")
        p(f"""v_and_b32 v{t1}, 1, v{t0}
        v_lshlrev_b32 v{dst}, 8, v{t1}
        v_bfe_u32 v{t1}, v{t0}, 3, 1
        v_lshl_add_u32 v{dst}, v{t1}, 7, v{dst}
        v_bfe_u32 v{t1}, v{t0}, 6, 3
        v_lshl_add_u32 v{dst}, v{t1}, 4, v{dst}
        v_bfe_u32 v{t1}, v{t0}, 1, 2
        v_lshl_add_u32 v{dst}, v{t1}, 2, v{dst}
        v_bfe_u32 v{t1}, v{t0}, 4, 2
        v_add_u32 v{dst}, v{dst}, v{t1}
        v_lshlrev_b32 v{dst}, 5, v{dst}
        v_and_b32 v{t1}, 1, v2
        v_lshl_add_u32 v{dst}, v{t1}, 4, v{dst}
        v_lshrrev_b32 v{t0}, 3, v2""")
        if m: p(f"v_sub_u32 v{t0}, 15, v{t0}")
        else: p(f"v_add_u32 v{t0}, 1, v{t0}")
        p(f"""v_bfe_u32 v{t1}, v{t0}, 2, 2
        v_lshl_add_u32 v{dst}, v{t1}, 20, v{dst}
        v_and_b32 v{t1}, 3, v{t0}
        v_lshl_add_u32 v{dst}, v{t1}, 14, v{dst}
        v_xor_b32 v{dst+1}, 0x200000, v{dst}""")
    p(f"s_lshl_b32 s8, s59, 2\ns_add_u32 s8, s8, s3\ns_lshl_b32 s8, s8, 16\ns_add_u32 s9, s8, {WS_WP}")
    add64(p, 50, 34, "s9")
    p(f"s_sub_u32 s9, {WS_WP + (15 << 16)}, s8")
    add64(p, 52, 34, "s9")
    p(f"""s_cmp_ge_u32 s38, 224
    s_cselect_b32 s8, 32, 0
    s_sub_u32 s42, s38, s8
    s_lshr_b32 s61, s42, 3
    s_and_b32 s60, s42, 7
    s_lshl_b32 s60, s60, 2
    s_add_u32 s60, s60, s3
    s_and_b32 s9, s60, 7
    s_lshl_b32 s9, s9, 5
    s_lshr_b32 s10, s60, 3
    s_lshl_b32 s10, s10, 2
    s_add_u32 s9, s9, s10
    s_mul_i32 s9, s9, 3584
    s_lshl_b32 s10, s61, 7
    s_add_u32 s9, s9, s10
    v_lshrrev_b32 v{t0}, 5, v2
    v_bfe_u32 v{t1}, v2, 3, 2
    v_lshl_add_u32 v{t0}, v{t0}, 4, v{t1}
    v_mul_u32_u24 v{so}, 3584, v{t0}
    v_and_b32 v{t0}, 7, v2
    v_lshl_add_u32 v{so}, v{t0}, 4, v{so}
    v_add_u32 v{so}, s9, v{so}
    v_add_u32 v{vq}, {256*3584}, v{so}
    s_lshl_b32 s8, s61, 7
    s_add_u32 s8, s8, s60
    s_lshl_b32 s8, s8, 10
    s_add_u32 s8, s8, {WS_WGU}""")
    add64(p, 60, 34, "s8")
    p(f"""v_lshrrev_b32 v{t1}, 3, v2
    v_lshlrev_b32 v{sd}, 10, v{t1}
    v_lshl_add_u32 v{sd}, v{t0}, 4, v{sd}
    s_mul_i32 s13, s42, 9363
    s_lshr_b32 s13, s13, 16
    s_mul_i32 s14, s13, 7
    s_sub_u32 s12, s42, s14
    s_and_b32 s14, s13, 3
    s_lshl_b32 s14, s14, 2
    s_add_u32 s14, s14, s3
    s_lshr_b32 s13, s13, 2
    s_mul_i32 s10, s14, 7
    s_add_u32 s10, s10, s12
    s_lshl_b32 s10, s10, 14
    s_lshl_b32 s13, s13, 7
    s_add_u32 s10, s10, s13""")
    add64(p, 44, 28, "s10"); add64(p, 46, 44, 8192)
    p(f"""s_lshl_b32 s10, s42, 2
    s_add_u32 s10, s10, s3
    s_lshl_b32 s10, s10, 11
    s_add_u32 s10, s10, {WS_WD}""")
    add64(p, 54, 34, "s10")
    p(f"""v_bfe_u32 v{t0}, v2, 5, 1
    v_bfe_u32 v{t1}, v2, 2, 2
    v_lshl_add_u32 v{t0}, v{t0}, 2, v{t1}
    v_and_b32 v{t2}, 3, v2
    v_lshl_add_u32 v{t2}, v{t2}, 3, s58
    v_lshl_add_u32 v{lg}, v{t0}, 7, v{t2}
    v_bfe_u32 v{t1}, v2, 4, 1
    v_lshl_add_u32 v{t2}, v{t1}, 5, v{lg}
    v_lshl_add_u32 v{lg}, v{t1}, 11, v{lg}
    v_add_u32 v{lh}, s58, v{va}""")
    p("; STAMP 6")
    p("s_waitcnt vmcnt(2)")
    p("; STAMP 7")
    p(f"""v_readfirstlane_b32 s40, v{ep}
    v_mov_b32 v{t0}, {L_FLAG}
    v_mov_b32 v{t1}, 1
    s_mov_b64 exec, 1
    ds_add_u32 v{t0}, v{t1}
    s_mov_b64 exec, -1
    s_add_u32 s40, s40, 1
    s_or_b32 s40, s40, 0xffff0000""")
    for q in range(4):
        p(f"v_mov_b32 v{WO[q]+1}, s40"); p(f"v_mov_b32 v{WO[q]+3}, s40")
    p("s_waitcnt vmcnt(0)")
    p("; STAMP 8")
    for x in range(2): p(f"ds_write_b128 v{lh}, v[{WL[x]}:{WL[x]+3}] offset:{6144 + x*1024}")
    for i in range(4): p(f"ds_read_b64_tr_b16 v[{WT[0]+2*i}:{WT[0]+2*i+1}], v{lt} offset:{6144 + (i>>1)*1024 + (i&1)*128}")
    p("s_waitcnt lgkmcnt(0)")
    for i in range(4):
        if i >= 2:
            for q in range(2): p(f"v_xor_b32 v{WT[0]+2*i+q}, v{mir}, v{WT[0]+2*i+q}")
        p(f"ds_write_b64 v{lp}, v[{WT[0]+2*i}:{WT[0]+2*i+1}] offset:{(i&1)*4096 + (i>>1)*8}")
    p("s_mov_b64 exec, 1")
    p(f"ds_add_u32 v{t0}, v{t1} offset:8")
    p("s_mov_b64 exec, -1")
    L = lab("hs")
    p(f"s_mov_b32 s15, {SPIN*16}")
    p(f"{L}:")
    p(f"ds_read_b32 v{t3}, v{t0} offset:8")
    p("s_sub_u32 s15, s15, 1"); p("s_cbranch_scc1 L_end")
    p("s_waitcnt lgkmcnt(0)")
    p(f"v_cmp_ne_u32 vcc, 4, v{t3}")
    p(f"s_cbranch_vccnz {L}")
    for n_ in range(4):
        p(f"ds_read_b32 v{WO[n_]}, v{lr} offset:{n_*512}")
        p(f"ds_read_b32 v{WO[n_]+2}, v{lr} offset:{n_*512+4}")
    for n_ in range(4):
        p(f"s_waitcnt lgkmcnt({6-2*n_})")
        bs = 52 if n_ & 2 else 50
        p(f"global_store_dwordx4 v{(vwm if n_ & 2 else vwp) + (n_ & 1)}, v[{WO[n_]}:{WO[n_]+3}], s[{bs}:{bs+1}] sc1")
    for mat in range(2):
        for half in range(2):
            p(f"s_add_u32 m0, s58, {(mat*2+half)*1024}")
            p(f"global_load_lds_dwordx4 v{vq if half else so}, s[{24+2*mat}:{25+2*mat}] nt")
    for e in range(2):
        p(f"s_add_u32 m0, s58, {4096 + e*1024}")
        p(f"global_load_lds_dwordx4 v{sd}, s[{44+2*e}:{45+2*e}] nt")
    p("s_waitcnt vmcnt(0)")
    p("; STAMP 9")
    for q in range(4):
        for half in range(2): p(f"ds_read_b64_tr_b16 v[{GF[q]+2*half}:{GF[q]+2*half+1}], v{lg} offset:{half*1024 + q*32}")
    for e in range(2):
        for half in range(2): p(f"ds_read_b64_tr_b16 v[{F[e]+2*half}:{F[e]+2*half+1}], v{t2} offset:{4096 + e*64 + half*1024}")
    for q in range(4):
        p(f"s_waitcnt lgkmcnt({10-2*q})")
        p(f"global_store_dwordx4 v{va}, v[{GF[q]}:{GF[q]+3}], s[60:61] sc1")
        if q < 3: add64(p, 60, 60, 32768)
    for e in range(2):
        p(f"s_waitcnt lgkmcnt({2-2*e})")
        p(f"global_store_dwordx4 v{va}, v[{F[e]}:{F[e]+3}], s[54:55] offset:{e*1024} sc1")
    p(f"""s_lshl_b32 s8, s36, 2
    s_add_u32 s8, s8, s3
    s_mul_i32 s8, s8, 112
    s_mul_i32 s9, s37, 7
    s_add_u32 s8, s8, s9
    s_lshl_b32 s8, s8, 10
    s_add_u32 s8, s8, {WS_HH+3072}""")
    add64(p, 6, 34, "s8")
    p("s_waitcnt vmcnt(2)")
    p(f"""v_mov_b32 v{t0}, {L_FLAG}
    v_mov_b32 v{t2}, 0x10000
    s_mov_b64 exec, 1
    ds_add_rtn_u32 v{t2}, v{t0}, v{t2} offset:4
    s_mov_b64 exec, -1
    s_waitcnt lgkmcnt(0)
    v_readfirstlane_b32 s8, v{t2}
    s_lshr_b32 s8, s8, 16
    s_cmp_eq_u32 s8, 3""")
    Ln = lab("nofl")
    p(f"s_cbranch_scc0 {Ln}")
    p(f"""s_lshl_b32 s8, s38, 7
    s_add_u32 s8, s8, {WS_FL2}""")
    add64(p, 4, 34, "s8")
    p("s_mov_b64 exec, 0xff")
    p(f"global_store_dwordx4 v{va}, v[{WO[0]}:{WO[0]+3}], s[4:5] sc1")
    p("s_mov_b64 exec, -1")
    p(f"{Ln}:")
    p("; STAMP 10")
    p(f"s_lshl_b32 s8, s38, 13\ns_lshl_b32 s9, s3, 11\ns_add_u32 s8, s8, s9\ns_add_u32 s8, s8, {WS_LN2}")
    add64(p, 4, 34, "s8")
    for i in range(2): p(f"global_store_dwordx4 v{va}, v[{SE}:{SE+3}], s[4:5] offset:{i*1024} sc1")
    p(f"""s_mul_i32 s8, s37, {224*1024}
    s_add_u32 s8, s8, {WS_WGU}
    s_lshl_b32 s12, s3, 10
    v_add_u32 v{vq}, s12, v{va}
    s_mul_i32 s9, s37, 7
    s_lshr_b32 s9, s9, 2
    s_lshl_b32 s9, s9, 3
    v_min_u32 v{t2}, 23, v2
    v_add_u32 v{t2}, s9, v{t2}
    v_min_u32 v{t2}, 223, v{t2}
    v_lshlrev_b32 v{t2}, 7, v{t2}""")
    add64(p, 10, 34, "s8")
    add64(p, 56, 34, WS_FL2)
    def dma_unit(u):
        p(f"s_add_u32 m0, s12, {addr[u]}")
        add64(p, 4, 10, (32*u[0] + 4*u[1])*1024)
        p(f"global_load_lds_dwordx4 v{vq}, s[4:5] sc1")
    poll(p, [f"global_load_dwordx4 v[{WL[0]}:{WL[0]+3}], v{t2}, s[56:57] sc1"], [WL[0]+1, WL[0]+3], t0, tag=t1, sleep=8)
    p("; STAMP 11")
    p("s_barrier")
    for u in units[:PRE0]: dma_unit(u)
    p("s_barrier")
    for t in range(7): p(f"global_store_dwordx4 v{va}, v[{SE}:{SE+3}], s[6:7] offset:{t*1024-3072} sc1")
    for u in units[PRE0:PRE1]: dma_unit(u)
    p(f"s_waitcnt vmcnt({PRE1-PRE0})")
    p("; STAMP 0")
    p("s_barrier")
    for u in units[PRE1:NPRE]: dma_unit(u)
    p("; STAMP 1")
    NWD = 13; NHH = 8
    R5 = RA(keep)
    u0 = R5(); lw = R5(); RBr = R5(2); cnt = R5(2)
    acc = R5(64, 4)
    WD = [R5(8, 4) for _ in range(NWD)]
    HH = [R5(8, 4) for _ in range(NHH)]
    assert R5.n <= 256, R5.n
    p(f"""s_and_b32 s8, s37, 7
    s_lshl_b32 s8, s8, 2
    s_add_u32 s8, s8, s3
    s_mul_i32 s8, s8, {56*1024}
    s_add_u32 s8, s8, {WS_WD}""")
    add64(p, 50, 34, "s8")
    p(f"""s_lshl_b32 s8, s36, 2
    s_lshr_b32 s9, s37, 3
    s_lshl_b32 s9, s9, 1
    s_add_u32 s8, s8, s9
    s_mul_i32 s8, s8, 112
    s_mul_i32 s9, s3, 28
    s_add_u32 s8, s8, s9
    s_lshl_b32 s8, s8, 10
    s_add_u32 s8, s8, {WS_HH}""")
    add64(p, 52, 34, "s8")
    vm = [("u", u) for u in units[:NPRE]]
    def wd_issue(ks):
        r = WD[ks % NWD]
        for nt in range(2):
            p(f"global_load_dwordx4 v[{r+4*nt}:{r+4*nt+3}], v{va}, s[50:51] offset:{(ks%2)*2048+nt*1024} sc1"); vm.append(("wd", ks))
        if ks % 2: add64(p, 50, 50, 4096)
    def hh_loads(ks):
        t, cbl = ks >> 2, ks & 3
        r = HH[ks % NHH]; L = []
        for rt in range(2):
            o = (rt*112 + cbl*7 + t)*1024
            L.append(f"s_add_u32 s4, s52, {o}\ns_addc_u32 s5, s53, 0\nglobal_load_dwordx4 v[{r+4*rt}:{r+4*rt+3}], v{va}, s[4:5] sc1")
        return L
    def wait_for(pred):
        idx = [i for i, t in enumerate(vm) if pred(t)]
        if not idx: return None
        lastx = max(idx); nn = len(vm) - 1 - lastx
        del vm[:lastx+1]
        return f"s_waitcnt vmcnt({nn})"
    nwd = 0
    for bi, b in enumerate(bars):
        nb_ = bars[bi+1] if bi + 1 < len(bars) else 10**9
        w = wait_for(lambda tg: tg[0] == "u" and first[tg[1]] < nb_ + PF)
        if w: p(w)
        p("s_barrier")
        for u in refill[b]:
            dma_unit(u); vm.append(("u", u))
            assert first[u] >= nb_ + PF
        if bi >= 1:
            for _ in range(5):
                if nwd < NWD: wd_issue(nwd); nwd += 1
    assert nwd == NWD
    p("; STAMP 2")
    PITCH = 272; SLAB = 64*PITCH
    p(f"""v_and_b32 v{u0}, 31, v2
    v_mul_u32_u24 v{lw}, {PITCH}, v{u0}
    v_lshrrev_b32 v{u0}, 5, v2
    v_lshl_add_u32 v{lw}, v{u0}, 4, v{lw}
    s_mul_i32 s8, s3, {SLAB}
    v_add_u32 v{lw}, s8, v{lw}
    s_add_u32 s41, s3, 4
    v_mov_b32 v{cnt}, {L_FLAG}""")
    RB = dict(S=[[WD[2*hf] , WD[2*hf]+4, WD[2*hf+1], WD[2*hf+1]+4] for hf in range(2)], lr=RBr, H=SE, O=WD[4], T=t0, go=RBr+1)
    final_setup(p, "s41", RB)
    gated = set()
    def gate(t):
        if t in gated: return
        gated.add(t)
        L = lab("gate")
        p(f"s_mov_b32 s15, {SPIN*16}")
        p(f"{L}:")
        p(f"ds_read_b32 v{cnt+1}, v{cnt} offset:4")
        p("s_sub_u32 s15, s15, 1"); p("s_cbranch_scc1 L_end")
        p("s_waitcnt lgkmcnt(0)")
        p(f"v_and_b32 v{cnt+1}, 0xffff, v{cnt+1}")
        p(f"v_cmp_gt_u32 vcc, {4*(t+1)}, v{cnt+1}")
        p("s_sleep 2")
        p(f"s_cbranch_vccnz {L}")
    def hh_issue(ks):
        gate(min((ks >> 2) + GATE_AHEAD, 6))
        for l in hh_loads(ks): p(l); vm.append(("hh", ks))
    nhh = 0
    while nhh < NHH: hh_issue(nhh); nhh += 1
    for ks in range(28):
        w = wait_for(lambda tg: tg in (("hh", ks), ("wd", ks))) or "s_nop 0"
        r = HH[ks % NHH]; wv = WD[ks % NWD]
        poll(p, hh_loads(ks), [r+i for i in (1, 3, 5, 7)], u0, pre_issued=True, wait=w)
        for nt in range(2):
            for rt in range(2):
                d = acc + 32*nt + 16*rt
                p(f"{MF32} v[{d}:{d+15}], v[{wv+4*nt}:{wv+4*nt+3}], v[{r+4*rt}:{r+4*rt+3}], {'0' if ks == 0 else 'v[%d:%d]'%(d,d+15)}")
        if nwd < 28: wd_issue(nwd); nwd += 1
        if nhh < 28: hh_issue(nhh); nhh += 1
        if ks == MIDBAR:
            p("; STAMP 3")
            p("s_barrier")
            p(f"global_load_dwordx4 v[{RB['H']}:{RB['H']+3}], v{RB['go']}, s[46:47] sc1"); vm.append(("h", 0))
    p("; STAMP 4")
    for nt in range(2):
        for rt in range(2):
            for q in range(4):
                b = acc + 32*nt + 16*rt + 4*q
                p(f"ds_write_b128 v{lw}, v[{b}:{b+3}] offset:{rt*32*PITCH + nt*128 + q*32}")
    p("s_waitcnt lgkmcnt(0)")
    p("s_barrier")
    p("; STAMP 5")
    final_reduce(p, "s41", RB)

PRE0 = 8
PRE1 = 18
GATE_AHEAD = 1
MIDBAR = 22

def build_single(path):
    hdr = open("cdna_kernels/%s.s.ref" % NAME).read().split("; Override launch")[0]
    name, text, nv, na, (grid, block, lds) = kernel()
    s = hdr + f"; @launch grid=({grid},1,1) block=({block},1,1) lds={lds}\n" + '.amdgcn_target "amdgcn-amd-amdhsa--gfx950"\n.text\n' + text + "\n" + kernel_desc(name, nv, na)
    open(path, "w").write(s)

if __name__ == "__main__":
    build_single(sys.argv[1] if len(sys.argv) > 1 else "mega.s")
```
